```python
import torch

def _softmax(x, axis=-1):
    return torch.softmax(x, dim=axis)

def _gelu(x):
    return torch.nn.functional.gelu(x, approximate='tanh')

def _silu(x):
    return torch.nn.functional.silu(x)

def _sigmoid(x):
    return torch.sigmoid(x)

def _layernorm(x, axis=-1, eps=1e-05):
    m = x.mean(dim=axis, keepdim=True)
    v = x.var(dim=axis, keepdim=True, unbiased=False)
    return (x - m) / torch.sqrt(v + eps)

def _scatter_add(tgt, idx, src, axis=0):
    return tgt.clone().index_add_(axis, idx, src)

def _segment_sum(src, seg, n):
    out = torch.zeros((n,) + src.shape[1:], dtype=src.dtype)
    return out.index_add_(0, seg, src)

def _pad(x, pw):
    flat = tuple((v for pair in reversed(pw) for v in pair))
    return torch.nn.functional.pad(x, flat)
kernel_name = 'adaLN_cond__sliding_block_cached__glu_gated_geglu__prompt'

def setup_inputs():

    _w = lambda a: (lambda t: t.to(torch.bfloat16) if t.is_floating_point() else t)(torch.as_tensor(a))

    def _A_setup():
        B, Sq, D = (1, 2048, 512)
        Hq, Hkv, Sk, Dh = (32, 32, 2048, 128)
        assert Hq % Hkv == 0, (Hq, Hkv)
        return {'x': _w((lambda *s: torch.randn(*s, dtype=torch.bfloat16) * 0.05)(B, Sq, D)), 'k_cache': _w((lambda *s: torch.randn(*s, dtype=torch.bfloat16) * 1.6)(B, Hkv, Sk, Dh)), 'v_cache': _w((lambda *s: torch.randn(*s, dtype=torch.bfloat16) * 0.8)(B, Hkv, Sk, Dh)), 'wq': _w((lambda *s: torch.randn(*s, dtype=torch.bfloat16) * 1.6)(D, Hq * Dh) * D ** (-0.5)), 'wo': _w((lambda *s: torch.randn(*s, dtype=torch.bfloat16) * 0.8)(Hq * Dh, D) * (Hq * Dh) ** (-0.5))}
    _A_in = _A_setup()

    def _B_setup():
        B, S, Dm, Df = (1, 2048, 512, 1376)
        return {'x': _w((lambda *s: torch.randn(*s, dtype=torch.bfloat16) * 0.05)(B, S, Dm)), 'w_gate': _w((lambda *s: torch.randn(*s, dtype=torch.bfloat16) * 0.8)(Dm, Df) * Dm ** (-0.5)), 'w_up': _w((lambda *s: torch.randn(*s, dtype=torch.bfloat16) * 0.8)(Dm, Df) * Dm ** (-0.5)), 'w_down': _w((lambda *s: torch.randn(*s, dtype=torch.bfloat16) * 0.8)(Df, Dm) * Df ** (-0.5))}
    _B_in = _B_setup()
    return {'A_x': _A_in['x'], 'A_k_cache': _A_in['k_cache'], 'A_v_cache': _A_in['v_cache'], 'A_wq': _A_in['wq'], 'A_wo': _A_in['wo'], 'B_x': _B_in['x'], 'B_w_gate': _B_in['w_gate'], 'B_w_up': _B_in['w_up'], 'B_w_down': _B_in['w_down'], 'c': _w((lambda *s: torch.randn(*s, dtype=torch.bfloat16) * 0.1)(1, 512) * 8.0), 'w_mod': _w((lambda *s: torch.randn(*s, dtype=torch.bfloat16) * 0.1)(512, 6 * 512) * 512 ** (-0.5) * 8.0)}

def reference(A_x, A_k_cache, A_v_cache, A_wq, A_wo, B_x, B_w_gate, B_w_up, B_w_down, c, w_mod):

    def _A_ref(x, k_cache, v_cache, wq, wo):
        B, Sq, D = x.shape
        Hq, Dh = (32, 128)
        Hkv, Sk = (k_cache.shape[1], k_cache.shape[2])
        W = min(4096, max(256, Sk // 4))
        rep = Hq // Hkv
        q = (lambda x, *d: x.permute(*d))((x @ wq).reshape(B, Sq, Hq, Dh), 0, 2, 1, 3)
        k = (lambda x, n, axis: torch.repeat_interleave(x, n, dim=axis))(k_cache[:, :, Sk - W:, :], rep, axis=1)
        v = (lambda x, n, axis: torch.repeat_interleave(x, n, dim=axis))(v_cache[:, :, Sk - W:, :], rep, axis=1)
        scores = torch.einsum('bhqd,bhkd->bhqk', q, k) * Dh ** (-0.5)
        p = _softmax(scores, axis=-1)
        o = torch.einsum('bhqk,bhkd->bhqd', p, v)
        return (lambda x, *d: x.permute(*d))(o, 0, 2, 1, 3).reshape(B, Sq, Hq * Dh) @ wo

    def _B_ref(x, w_gate, w_up, w_down):
        g = torch.einsum('bsd,df->bsf', x, w_gate)
        u = torch.einsum('bsd,df->bsf', x, w_up)
        h = _gelu(g) * u
        return torch.einsum('bsf,fd->bsd', h, w_down)
    x = A_x
    mod = (_silu(c) @ w_mod).reshape(c.shape[0], 6, 1, -1)
    sa, ca, ga, sb, cb, gb = (mod[:, 0].clone(), mod[:, 1].clone(), mod[:, 2].clone(), mod[:, 3].clone(), mod[:, 4].clone(), mod[:, 5].clone())
    h = _layernorm(x, axis=-1) * (1 + ca) + sa
    x = x + ga * _A_ref(h, A_k_cache, A_v_cache, A_wq, A_wo)
    h = _layernorm(x, axis=-1) * (1 + cb) + sb
    x = x + gb * _B_ref(h, B_w_gate, B_w_up, B_w_down)
    return x
```

```python
import re

REG_RE = re.compile(r'^(-|\|)?([vas])(\d+)\|?$')
RNG_RE = re.compile(r'^(-|\|)?([vas])\[(\d+):(\d+)\]\|?$')


def parse_reg(tok):
    tok = tok.strip()
    m = REG_RE.match(tok)
    if m:
        return [(m.group(2), int(m.group(3)))]
    m = RNG_RE.match(tok)
    if m:
        return [(m.group(2), i) for i in range(int(m.group(3)), int(m.group(4)) + 1)]
    if tok == 'vcc':
        return [('s', 'vcc_lo'), ('s', 'vcc_hi')]
    if tok in ('vcc_lo', 'vcc_hi'):
        return [('s', tok)]
    if tok == 'exec':
        return [('s', 'exec_lo'), ('s', 'exec_hi')]
    if tok in ('exec_lo', 'exec_hi'):
        return [('s', tok)]
    if tok == 'm0':
        return [('s', 'm0')]
    return []


def split_ops(rest):
    out, depth, cur = [], 0, ''
    for ch in rest:
        if ch in '[(':
            depth += 1
        elif ch in '])':
            depth -= 1
        if ch == ',' and depth == 0:
            out.append(cur.strip())
            cur = ''
        else:
            cur += ch
    out.append(cur.strip())
    return out


TRANS = ('v_exp_f32', 'v_log_f32', 'v_rcp_f32', 'v_rsq_f32', 'v_sqrt_f32', 'v_sin_f32', 'v_cos_f32',
         'v_rcp_iflag_f32')
RMW_DST = ('v_fmac_f32', 'v_mac_f32', 'v_dot2c_f32_bf16', 'v_writelane_b32', 'v_fmac_f32_e32',
           'v_pk_fmac_f16', 'v_cndmask_b32_dpp')


class Ins:
    __slots__ = ('text', 'op', 'kind', 'reads', 'writes', 'passes', 'srcc', 'is_lds_dma', 'wide_store',
                 'dpp', 'states', 'comment')

    def __init__(self, text):
        self.text = text
        t = text.split(';')[0].strip()
        self.comment = None
        parts = t.split(None, 1)
        op = parts[0]
        self.op = op
        rest = parts[1] if len(parts) > 1 else ''
        ops = split_ops(rest) if rest else []
        mods = []
        if ops:
            last = ops[-1].split()
            ops[-1] = last[0] if last else ''
            mods = last[1:]
        self.reads = set()
        self.writes = set()
        self.passes = 0
        self.srcc = set()
        self.is_lds_dma = False
        self.wide_store = False
        self.dpp = ('_dpp' in op) or any(m.startswith(('row_', 'quad_perm', 'wave_', 'row_bcast')) for m in mods)
        self.states = 1
        R = lambda i: set(parse_reg(ops[i])) if i < len(ops) else set()
        if op.startswith('v_mfma'):
            self.kind = 'mfma'
            self.writes = R(0)
            self.reads = R(1) | R(2) | R(3)
            self.srcc = R(3)
            self.passes = 8 if '32x32x16' in op else 4 if '16x16x32' in op else 16
        elif op.startswith('v_'):
            self.kind = 'valu'
            if op.startswith('v_cmp'):
                self.writes = R(0)
                for i in range(1, len(ops)):
                    self.reads |= R(i)
                if op.startswith('v_cmpx'):
                    self.writes |= set(parse_reg('exec'))
            elif op.startswith('v_permlane32_swap') or op.startswith('v_permlane16_swap'):
                self.writes = R(0) | R(1)
                self.reads = R(0) | R(1)
            elif op.startswith(('v_add_co', 'v_sub_co', 'v_addc_co', 'v_subb_co', 'v_subrev_co', 'v_div_scale')):
                self.writes = R(0) | R(1)
                for i in range(2, len(ops)):
                    self.reads |= R(i)
            else:
                self.writes = R(0)
                for i in range(1, len(ops)):
                    self.reads |= R(i)
                base = op.replace('_e32', '').replace('_e64', '')
                if base in RMW_DST or self.dpp:
                    self.reads |= R(0)
            if op.replace('_e32', '').replace('_e64', '') in TRANS:
                self.kind = 'trans'
        elif op.startswith('ds_'):
            self.kind = 'ds'
            if op.startswith(('ds_read', 'ds_bpermute', 'ds_permute', 'ds_swizzle')):
                self.writes = R(0)
                for i in range(1, len(ops)):
                    self.reads |= R(i)
            else:
                for i in range(len(ops)):
                    self.reads |= R(i)
        elif op.startswith(('buffer_load', 'global_load')):
            self.kind = 'vmem'
            if 'lds' in mods or op.startswith('global_load_lds'):
                self.is_lds_dma = True
                for i in range(len(ops)):
                    self.reads |= R(i)
                self.reads.add(('s', 'm0'))
            else:
                self.writes = R(0)
                for i in range(1, len(ops)):
                    self.reads |= R(i)
        elif op.startswith(('buffer_store', 'global_store', 'buffer_atomic', 'global_atomic')):
            self.kind = 'vmem'
            for i in range(len(ops)):
                self.reads |= R(i)
            self.wide_store = op.endswith(('x3', 'x4'))
            if op.startswith(('buffer_atomic', 'global_atomic')) and ('sc0' in mods or 'glc' in mods):
                self.writes = R(0)
        elif op.startswith(('buffer_wbl2', 'buffer_inv', 'buffer_gl')):
            self.kind = 'vmem'
        elif op.startswith(('s_load', 's_buffer_load', 's_memtime', 's_memrealtime', 's_atomic')):
            self.kind = 'smem'
            self.writes = R(0)
            for i in range(1, len(ops)):
                self.reads |= R(i)
        elif op == 's_waitcnt':
            self.kind = 'wait'
        elif op == 's_nop':
            self.kind = 'nop'
            self.states = int(ops[0], 0) + 1
        elif op in ('s_barrier', 's_endpgm', 's_setprio', 's_sleep'):
            self.kind = 'ctl'
        elif op.startswith(('s_cbranch', 's_branch')):
            self.kind = 'branch'
        elif op.startswith('s_'):
            self.kind = 'salu'
            if op.startswith(('s_cmp', 's_bitcmp')):
                for i in range(len(ops)):
                    self.reads |= R(i)
            else:
                self.writes = R(0)
                for i in range(1, len(ops)):
                    self.reads |= R(i)
                if op.startswith('s_and_saveexec') or op.startswith('s_or_saveexec'):
                    self.writes |= set(parse_reg('exec'))
                    self.reads |= set(parse_reg('exec'))
        else:
            raise ValueError('unknown op ' + text)

    def is_valu(self):
        return self.kind in ('valu', 'trans')


WAIT_RE = re.compile(r'(vmcnt|lgkmcnt)\((\d+)\)')


class State:
    def __init__(self):
        self.vm = []
        self.lg = []
        self.hist = []

    def copy(self):
        s = State()
        s.vm = list(self.vm)
        s.lg = list(self.lg)
        s.hist = list(self.hist)
        return s


def required_nops(hist, ins):
    need = 0
    dist = 0
    for p in reversed(hist):
        if dist >= 20:
            break
        req = 0
        pw = p.writes
        if p.kind == 'mfma':
            ov = pw & (ins.reads | ins.writes)
            if ov:
                if ins.kind == 'mfma':
                    ab = ins.reads - ins.srcc
                    if pw & ab:
                        req = max(req, {4: 8, 8: 12, 16: 20}[p.passes])
                    if pw & ins.srcc:
                        if pw == ins.srcc and p.passes == ins.passes:
                            pass
                        else:
                            req = max(req, {4: 6, 8: 10, 16: 18}[p.passes])
                    if (pw & ins.writes) and not (pw & ins.srcc):
                        req = max(req, {4: 6, 8: 10, 16: 18}[p.passes])
                else:
                    req = max(req, {4: 8, 8: 12, 16: 20}[p.passes])
            if ins.is_valu() and (p.srcc & ins.writes):
                req = max(req, {4: 3, 8: 7, 16: 15}[p.passes])
        elif p.is_valu():
            vw = {r for r in pw if r[0] in 'va'}
            sw = {r for r in pw if r[0] == 's'}
            if ins.kind == 'mfma' and (vw & ins.reads):
                req = max(req, 2)
            if ins.kind == 'mfma' and (('s', 'exec_lo') in sw):
                req = max(req, 4)
            if ins.is_valu():
                if p.kind == 'trans' and (vw & ins.reads) and ins.kind != 'trans':
                    req = max(req, 1)
                if p.kind == 'trans' and (vw & ins.reads) and ins.kind == 'trans':
                    req = max(req, 1)
                if ins.dpp and (vw & ins.reads):
                    req = max(req, 2)
                if ins.op.startswith('v_permlane') and (vw & ins.reads):
                    req = max(req, 2)
                if ins.op.startswith(('v_readfirstlane', 'v_readlane')) and (vw & ins.reads):
                    req = max(req, 1)
                if sw & ins.reads:
                    req = max(req, 4 if ins.op.startswith(('v_readlane', 'v_writelane')) else 2)
                if p.op.startswith('v_dot') and (vw & (ins.reads | ins.writes)):
                    if not (ins.op == p.op and not (vw & (ins.reads - ins.writes))):
                        req = max(req, 3)
                if ('s', 'exec_lo') in sw and (ins.dpp):
                    req = max(req, 5)
            if ins.kind == 'vmem' and (sw & ins.reads):
                req = max(req, 5)
            if ins.kind == 'salu' and (sw & ins.reads):
                req = max(req, 4)
            if ins.kind == 'smem' and (sw & ins.reads):
                req = max(req, 5)
            if ins.kind == 'branch' and sw & {('s', 'vcc_lo'), ('s', 'vcc_hi'), ('s', 'exec_lo')}:
                req = max(req, 5)
        elif p.kind == 'salu':
            if ('s', 'm0') in pw and ins.kind == 'vmem' and ins.is_lds_dma:
                req = max(req, 1)
        elif p.kind == 'vmem' and p.wide_store:
            data = p.reads
            if ins.writes & data:
                req = max(req, 2 if ins.is_valu() else 1)
        if req > dist:
            need = max(need, req - dist)
        dist += p.states
    return need


def process(instrs, st, out):
    for ins in instrs:
        if ins.kind == 'wait':
            for name, n in WAIT_RE.findall(ins.text):
                n = int(n)
                if name == 'vmcnt':
                    st.vm = st.vm[len(st.vm) - n:] if n < len(st.vm) else st.vm
                    if n == 0:
                        st.vm = []
                else:
                    if n == 0:
                        st.lg = []
                    elif not any(s for _, s in st.lg):
                        st.lg = st.lg[len(st.lg) - n:] if n < len(st.lg) else st.lg
            out.append(ins)
            st.hist.append(ins)
            continue
        touched = ins.reads | ins.writes
        wv = None
        for i, d in enumerate(st.vm):
            if d & touched:
                wv = len(st.vm) - 1 - i
        wl = None
        for i, (d, sm) in enumerate(st.lg):
            if d & touched:
                wl = len(st.lg) - 1 - i
        if wl is not None and any(s for _, s in st.lg):
            wl = 0
        if wv is not None or wl is not None:
            parts = []
            if wv is not None:
                wv = min(wv, 63)
                parts.append('vmcnt(%d)' % wv)
                st.vm = st.vm[len(st.vm) - wv:] if wv else []
            if wl is not None:
                wl = min(wl, 15)
                parts.append('lgkmcnt(%d)' % wl)
                st.lg = st.lg[len(st.lg) - wl:] if wl else []
            w = Ins('s_waitcnt ' + ' '.join(parts))
            out.append(w)
            st.hist.append(w)
        n = required_nops(st.hist, ins)
        while n > 0:
            k = min(n, 16)
            w = Ins('s_nop %d' % (k - 1))
            out.append(w)
            st.hist.append(w)
            n -= k
        out.append(ins)
        st.hist.append(ins)
        if len(st.hist) > 40:
            st.hist = st.hist[-40:]
        if ins.kind == 'vmem':
            st.vm.append(set(ins.writes))
            assert len(st.vm) <= 63 or True
        elif ins.kind == 'ds':
            st.lg.append((set(ins.writes), False))
        elif ins.kind == 'smem':
            st.lg.append((set(ins.writes), True))


class Prog:
    def __init__(self):
        self.items = []

    def e(self, text):
        for line in text.strip().split('\n'):
            line = line.strip()
            if not line or line.startswith(';'):
                continue
            self.items.append(Ins(line))

    def raw(self, text):
        self.items.append(('raw', text))

    def label(self, name):
        self.items.append(('label', name))

    def fence(self):
        self.items.append(('fence',))

    def loop(self, name, body):
        self.items.append(('loop', name, body))

    def emit(self, st=None):
        st = st or State()
        lines = []
        self._emit(st, lines)
        return lines

    def _emit(self, st, lines):
        for it in self.items:
            if isinstance(it, Ins):
                out = []
                process([it], st, out)
                lines.extend('    ' + o.text for o in out)
            elif it[0] == 'raw':
                lines.append(it[1])
            elif it[0] == 'label':
                lines.append(it[1] + ':')
            elif it[0] == 'fence':
                lines.append('    s_waitcnt vmcnt(0) lgkmcnt(0)')
                lines.append('    s_nop 15')
                lines.append('    s_nop 3')
                st.vm = []
                st.lg = []
                st.hist = []
            elif it[0] == 'loop':
                name, body = it[1], it[2]
                texts = []
                s = st
                for k in range(4):
                    l = []
                    s2 = s.copy()
                    body._emit(s2, l)
                    texts.append(l)
                    s = s2
                merged = merge_variants(texts)
                lines.append(name + ':')
                lines.extend(merged)
                s = st
                for k in range(2):
                    o = []
                    for l in merged:
                        if l.endswith(':'):
                            continue
                        process([Ins(l.strip())], s, o)
                    extra = len(o) - len([l for l in merged if not l.endswith(':')])
                    assert extra == 0, 'loop merge not a fixed point in %s (%d extra)' % (name, extra)
                st.vm, st.lg, st.hist = s.vm, s.lg, s.hist


def merge_variants(texts):
    def split(t):
        groups = []
        pre = []
        for l in t:
            s = l.strip()
            if (s.startswith('s_waitcnt') or s.startswith('s_nop')) and l.endswith(' ;auto') is False and getattr(l, 'auto', True) and False:
                pass
            pre.append(l)
        return pre
    def toks(t):
        res = []
        pad = []
        for l in t:
            s = l.strip()
            if s.startswith('s_waitcnt') or s.startswith('s_nop'):
                pad.append(s)
            else:
                res.append((pad, l))
                pad = []
        res.append((pad, None))
        return res
    T = [toks(t) for t in texts]
    n = len(T[0])
    assert all(len(x) == n for x in T), 'variant mismatch'
    out = []
    for i in range(n):
        vm = None
        lg = None
        nop = 0
        for x in T:
            pn = 0
            for p in x[i][0]:
                if p.startswith('s_waitcnt'):
                    for name, v in WAIT_RE.findall(p):
                        v = int(v)
                        if name == 'vmcnt':
                            vm = v if vm is None else min(vm, v)
                        else:
                            lg = v if lg is None else min(lg, v)
                else:
                    pn += int(p.split()[1]) + 1
            nop = max(nop, pn)
        if vm is not None or lg is not None:
            parts = []
            if vm is not None:
                parts.append('vmcnt(%d)' % vm)
            if lg is not None:
                parts.append('lgkmcnt(%d)' % lg)
            out.append('    s_waitcnt ' + ' '.join(parts))
        while nop > 0:
            k = min(nop, 16)
            out.append('    s_nop %d' % (k - 1))
            nop -= k
        if T[0][i][1] is not None:
            out.append(T[0][i][1])
    return out
```

```python
import sys
sys.path.insert(0, 'gen')
from asmlib import *

KA_X, KA_K, KA_V, KA_WQ, KA_WO, KA_BX, KA_WG, KA_WU, KA_WD, KA_C, KA_WMOD, KA_OUT, KA_DBG, KA_WS = [8 * i for i in range(14)]

WS_COEF = 0x0000000
WS_XH = 0x0100000
WS_O = 0x0400000
WS_X2 = 0x1400000
WS_X2A = 0x1600000
WS_ST = 0x1800000
WS_S12 = 0x1900000
WS_HH = 0x1A00000

SRD3 = '0x00020000'
import math
C0 = math.log2(math.e) / math.sqrt(128.0)


def rng(c, b, n):
    return '%s[%d:%d]' % (c, b, b + n - 1) if n > 1 else '%s%d' % (c, b)


def vr(b, n=1):
    return rng('v', b, n)


def ar(b, n=1):
    return rng('a', b, n)


def sr(b, n=1):
    return rng('s', b, n)


def srd(P, d, ptr, off, nbytes):
    if off == 0:
        P.e('s_mov_b32 s%d, s%d' % (d, ptr))
        P.e('s_mov_b32 s%d, s%d' % (d + 1, ptr + 1))
    else:
        o = off if isinstance(off, str) else '0x%x' % off
        P.e('s_add_u32 s%d, s%d, %s' % (d, ptr, o))
        P.e('s_addc_u32 s%d, s%d, 0' % (d + 1, ptr + 1))
    P.e('s_mov_b32 s%d, 0x%x' % (d + 2, nbytes))
    P.e('s_mov_b32 s%d, %s' % (d + 3, SRD3))


def kernel_text(name, P, nvgpr, accum=None):
    body = '\n'.join(P.emit())
    acc = accum if accum is not None else min(256, (nvgpr + 3) // 4 * 4)
    text = """.text
.globl %s
.p2align 8
.type %s,@function
%s:
%s
""" % (name, name, name, body)
    desc = """.section .rodata,"a"
.p2align 6
.amdhsa_kernel %s
  .amdhsa_next_free_vgpr %d
  .amdhsa_next_free_sgpr 102
  .amdhsa_accum_offset %d
  .amdhsa_group_segment_fixed_size 0
  .amdhsa_kernarg_size 112
  .amdhsa_user_sgpr_count 2
  .amdhsa_user_sgpr_kernarg_segment_ptr 1
  .amdhsa_system_sgpr_workgroup_id_x 1
.end_amdhsa_kernel
""" % (name, nvgpr, acc)
    return text, desc


def wave_lane(P, vlane, swave, tmp):
    P.e('v_lshrrev_b32 v%d, 6, v0' % tmp)
    P.e('v_and_b32 v%d, 63, v0' % vlane)
    P.e('v_readfirstlane_b32 s%d, v%d' % (swave, tmp))


def f2u(x):
    import struct
    return struct.unpack('<I', struct.pack('<f', x))[0]


def fhex(x):
    return '0x%08x' % f2u(x)


def round_bf16(P, dst, src, tmp=None):
    P.e('v_cvt_pk_bf16_f32 v%d, v%d, v%d' % (dst, src, src))
    P.e('v_lshlrev_b32 v%d, 16, v%d' % (dst, dst))


class Prof:
    def __init__(self, on, base=64):
        self.on = on
        self.n = 0
        self.base = base

    def stamp(self, P):
        if not self.on:
            return
        b = self.base + 4 * self.n
        assert b + 3 < 100
        P.e('s_memtime s[%d:%d]' % (b, b + 1))
        P.e('s_memrealtime s[%d:%d]' % (b + 2, b + 3))
        P.e('s_waitcnt lgkmcnt(0)')
        self.n += 1

    def dump(self, P, wg, lbl):
        if not self.on:
            return
        self.stamp(P)
        P.e('s_load_dwordx2 s[56:57], s[0:1], %d' % KA_DBG)
        P.e('s_waitcnt lgkmcnt(0)')
        P.e('s_cmp_lg_u32 s2, %d' % wg)
        P.e('s_cbranch_scc1 %s' % lbl)
        P.e('s_mov_b32 s58, 256')
        P.e('s_mov_b32 s59, 0x00020000')
        P.e('v_cmp_eq_u32 vcc, 0, v0')
        P.e('s_and_saveexec_b64 s[60:61], vcc')
        P.e('s_cbranch_execz %s' % lbl)
        P.e('v_mov_b32 v3, 0')
        regs = []
        for i in range(self.n):
            regs += [self.base + 4 * i, self.base + 4 * i + 2]
        for i, rg in enumerate(regs):
            P.e('v_mov_b32 v2, s%d' % rg)
            P.e('buffer_store_dword v2, v3, s[56:59], 0 offen offset:%d' % (4 * i))
            P.e('s_waitcnt vmcnt(0)')
        P.label(lbl)


WS_TL = 0x3000000


def tl_start(P, on):
    if on:
        P.e('s_memrealtime s[96:97]')
        P.e('s_waitcnt lgkmcnt(0)')


def tl_end(P, on, kidx, lbl):
    if not on:
        return
    P.e('s_waitcnt vmcnt(0)')
    P.e('s_memrealtime s[98:99]')
    P.e('s_load_dwordx2 s[56:57], s[0:1], %d' % KA_WS)
    P.e('s_waitcnt lgkmcnt(0)')
    P.e('s_add_u32 s56, s56, 0x%x' % (WS_TL + kidx * 4096))
    P.e('s_addc_u32 s57, s57, 0')
    P.e('s_mov_b32 s58, 4096')
    P.e('s_mov_b32 s59, 0x00020000')
    P.e('v_cmp_eq_u32 vcc, 0, v0')
    P.e('s_and_saveexec_b64 s[60:61], vcc')
    P.e('s_cbranch_execz %s' % lbl)
    P.e('s_lshl_b32 s62, s2, 3')
    P.e('v_mov_b32 v4, s62')
    P.e('v_mov_b32 v2, s96')
    P.e('v_mov_b32 v3, s98')
    P.e('buffer_store_dwordx2 v[2:3], v4, s[56:59], 0 offen')
    P.e('s_waitcnt vmcnt(0)')
    P.label(lbl)
```

```python
from common import *

LOG2E = 1.4426950408889634


def gen_k0(name='ada_prep_kernel', opt=None):
    opt = opt or {}
    tl = opt.get('tl', 0)
    P = Prog()
    END = 'L_k0_end'
    P.e('s_cmp_ge_u32 s2, 160')
    P.e('s_cbranch_scc1 %s' % END)
    tl_start(P, tl)
    P.e('s_load_dwordx2 s[4:5], s[0:1], %d' % KA_X)
    P.e('s_load_dwordx2 s[6:7], s[0:1], %d' % KA_C)
    P.e('s_load_dwordx2 s[8:9], s[0:1], %d' % KA_WMOD)
    P.e('s_load_dwordx2 s[10:11], s[0:1], %d' % KA_WS)
    wave_lane(P, 1, 12, 2)
    P.e('s_cmp_ge_u32 s2, 96')
    P.e('s_cbranch_scc1 L_k0_ln')
    P.e('s_waitcnt lgkmcnt(0)')
    G = Prog()
    srd(G, 16, 6, 0, 1024)
    srd(G, 20, 8, 0, 512 * 6144)
    srd(G, 24, 10, WS_COEF, 3072 * 4)
    G.e('s_and_b32 s13, s2, 7')
    G.e('s_lshl_b32 s13, s13, 1')
    G.e('s_bfe_u32 s14, s2, 0x10003')
    G.e('s_add_u32 s13, s13, s14')
    G.e('s_lshr_b32 s14, s2, 4')
    G.e('s_lshl_b32 s14, s14, 4')
    G.e('s_add_u32 s13, s13, s14')
    G.e('v_lshrrev_b32 v2, 2, v0')
    G.e('v_and_b32 v3, 3, v0')
    G.e('v_mul_u32_u24 v4, 6144, v2')
    G.e('v_lshl_add_u32 v4, v3, 4, v4')
    G.e('v_lshlrev_b32 v5, 1, v2')
    G.e('s_lshl_b32 s28, s13, 6')
    for i in range(8):
        G.e('buffer_load_ushort v%d, v5, s[16:19], 0 offen offset:%d' % (8 + i, 128 * i))
    for i in range(8):
        G.e('buffer_load_dwordx4 %s, v4, s[20:23], s28 offen' % vr(32 + 4 * i, 4))
        if i < 7:
            G.e('s_add_u32 s28, s28, %d' % (64 * 6144))
    G.e('s_lshr_b32 s14, s13, 4')
    G.e('s_cmp_eq_u32 s14, 1')
    G.e('s_cselect_b32 s15, 1, 0')
    G.e('s_cmp_eq_u32 s14, 4')
    G.e('s_cselect_b32 s15, 1, s15')
    G.e('s_cmp_lg_u32 s15, 0')
    G.e('s_cselect_b32 s15, 0x3f800000, 0')
    G.e('s_cmp_le_u32 s14, 1')
    G.e('s_cselect_b32 s29, %s, 0x3f800000' % fhex(C0))
    for i in range(8):
        c = 8 + i
        G.e('v_lshlrev_b32 v%d, 16, v%d' % (c, c))
        G.e('v_mul_f32 v16, %s, v%d' % (fhex(-LOG2E), c))
        G.e('v_exp_f32 v16, v16')
        G.e('v_add_f32 v16, 1.0, v16')
        G.e('v_rcp_f32 v16, v16')
        G.e('v_mul_f32 v%d, v%d, v16' % (c, c))
        round_bf16(G, c, c)
    for j in range(8):
        G.e('v_mov_b32 v%d, 0' % (20 + j))
    for i in range(8):
        for d in range(4):
            w = 32 + 4 * i + d
            G.e('v_lshlrev_b32 v16, 16, v%d' % w)
            G.e('v_and_b32 v17, 0xffff0000, v%d' % w)
            G.e('v_fmac_f32 v%d, v%d, v16' % (20 + 2 * d, 8 + i))
            G.e('v_fmac_f32 v%d, v%d, v17' % (21 + 2 * d, 8 + i))
    G.e('v_lshlrev_b32 v6, 7, v2')
    G.e('v_lshl_add_u32 v6, v3, 5, v6')
    G.e('ds_write_b128 v6, v[20:23]')
    G.e('ds_write_b128 v6, v[24:27] offset:16')
    G.e('v_lshrrev_b32 v6, 5, v0')
    G.e('v_and_b32 v7, 31, v0')
    G.e('v_lshlrev_b32 v6, 10, v6')
    G.e('v_lshl_add_u32 v6, v7, 2, v6')
    G.e('s_waitcnt lgkmcnt(0)')
    G.e('s_barrier')
    for p in range(8):
        G.e('ds_read_b32 v%d, v6 offset:%d' % (32 + p, 128 * p))
    for st in (4, 2, 1):
        for p in range(st):
            G.e('v_add_f32 v%d, v%d, v%d' % (32 + p, 32 + p, 32 + p + st))
    G.e('s_waitcnt lgkmcnt(0)')
    G.e('s_barrier')
    G.e('v_lshlrev_b32 v6, 2, v0')
    G.e('ds_write_b32 v6, v32')
    G.e('s_waitcnt lgkmcnt(0)')
    G.e('s_barrier')
    G.e('s_cmp_ge_u32 s12, 1')
    G.e('s_cbranch_scc1 %s' % END)
    G.e('v_lshlrev_b32 v6, 2, v7')
    for p in range(8):
        G.e('ds_read_b32 v%d, v6 offset:%d' % (32 + p, 128 * p))
    for st in (4, 2, 1):
        for p in range(st):
            G.e('v_add_f32 v%d, v%d, v%d' % (32 + p, 32 + p, 32 + p + st))
    round_bf16(G, 32, 32)
    G.e('v_add_f32 v32, s15, v32')
    round_bf16(G, 32, 32)
    G.e('v_mul_f32 v32, s29, v32')
    G.e('s_lshl_b32 s28, s13, 7')
    G.e('v_cmp_gt_u32 vcc, 32, v1')
    G.e('s_and_saveexec_b64 s[30:31], vcc')
    G.e('buffer_store_dword v32, v6, s[24:27], s28 offen')
    tl_end(G, tl, 0, 'L_k0_tl1')
    G.e('s_endpgm')
    P.items += G.items
    P.label('L_k0_ln')
    L = Prog()
    L.e('s_waitcnt lgkmcnt(0)')
    srd(L, 16, 4, 0, 2048 * 1024)
    srd(L, 20, 10, WS_XH, 2 << 20)
    L.e('s_sub_u32 s13, s2, 96')
    L.e('v_and_b32 v2, 31, v1')
    L.e('v_lshrrev_b32 v3, 5, v1')
    L.e('v_lshlrev_b32 v4, 10, v2')
    L.e('v_lshl_add_u32 v4, v3, 4, v4')
    L.e('s_lshl_b32 s28, s13, 15')
    L.e('s_lshl_b32 s29, s12, 8')
    L.e('s_add_u32 s28, s28, s29')
    for i in range(8):
        L.e('buffer_load_dwordx4 %s, v4, s[16:19], s28 offen offset:%d' % (vr(32 + 4 * i, 4), 32 * i))
    for i in range(32):
        L.e('v_lshlrev_b32 v%d, 16, v%d' % (64 + 2 * i, 32 + i))
        L.e('v_and_b32 v%d, 0xffff0000, v%d' % (65 + 2 * i, 32 + i))

    def reduce_rows(src0, dst, slot):
        for a in range(4):
            L.e('v_add_f32 v%d, v%d, v%d' % (8 + a, src0 + a, src0 + 4 + a))
        for i in range(2, 16):
            for a in range(4):
                L.e('v_add_f32 v%d, v%d, v%d' % (8 + a, 8 + a, src0 + 4 * i + a))
        L.e('v_add_f32 v8, v8, v9')
        L.e('v_add_f32 v10, v10, v11')
        L.e('v_add_f32 v8, v8, v10')
        L.e('ds_write_b32 v5, v8 offset:%d' % slot)
        L.e('s_waitcnt lgkmcnt(0)')
        L.e('s_barrier')
        L.e('ds_read_b128 v[8:11], v6 offset:%d' % slot)
        L.e('ds_read_b128 v[12:15], v6 offset:%d' % (slot + 16))
        for a in range(4):
            L.e('v_add_f32 v%d, v%d, v%d' % (8 + a, 8 + a, 12 + a))
        L.e('v_add_f32 v8, v8, v9')
        L.e('v_add_f32 v10, v10, v11')
        L.e('v_add_f32 v%d, v8, v10' % dst)

    L.e('v_lshlrev_b32 v6, 5, v2')
    L.e('s_lshl_b32 s29, s12, 3')
    L.e('v_lshl_add_u32 v5, v3, 2, v6')
    L.e('v_add_u32 v5, s29, v5')
    reduce_rows(64, 24, 0)
    L.e('v_mul_f32 v24, %s, v24' % fhex(1.0 / 512))
    for i in range(64):
        L.e('v_sub_f32 v%d, v%d, v24' % (64 + i, 64 + i))
    for i in range(64):
        L.e('v_mul_f32 v%d, v%d, v%d' % (128 + i, 64 + i, 64 + i))
    reduce_rows(128, 25, 1024)
    L.e('v_mov_b32 v26, %s' % fhex(1e-5))
    L.e('v_fmac_f32 v26, %s, v25' % fhex(1.0 / 512))
    L.e('v_rsq_f32 v26, v26')
    for i in range(64):
        L.e('v_mul_f32 v%d, v%d, v26' % (64 + i, 64 + i))
    for i in range(32):
        L.e('v_cvt_pk_f16_f32 v%d, v%d, v%d' % (32 + i, 64 + 2 * i, 65 + 2 * i))
    L.e('v_lshlrev_b32 v4, 4, v1')
    L.e('s_lshl_b32 s28, s13, 15')
    L.e('s_lshl_b32 s29, s12, 13')
    L.e('s_add_u32 s28, s28, s29')
    for i in range(8):
        if i == 4:
            L.e('s_add_u32 s28, s28, 4096')
        L.e('buffer_store_dwordx4 %s, v4, s[20:23], s28 offen offset:%d' % (vr(32 + 4 * i, 4), 1024 * (i & 3)))
    tl_end(L, tl, 0, 'L_k0_tl2')
    P.items += L.items
    P.label(END)
    P.e('s_endpgm')
    return kernel_text(name, P, 192)
```

```python
from common import *
import math

RS = 33280
KI = 8448
VOFF = 2 * KI
VI = 8192
COEF = 4 * RS
FLAG = COEF + 4096 + 256
LDS_BYTES = FLAG + 64

ACC = lambda dt, cb: 64 + (dt * 2 + cb) * 16
XR = lambda j, cb: 192 + 8 * (j % 8) + 4 * cb
AR = lambda n: 128 + (n % 8) * 4
SB = lambda b, cb: 64 + b * 32 + cb * 16
PB = lambda b, cb, ks: 128 + b * 16 + (cb * 2 + ks) * 4
OA = lambda dt, cb: (dt * 2 + cb) * 16
NEG = lambda cb: 32 + 16 * cb
CF = lambda b: 32 + 16 * b
MF = 'v_mfma_f32_32x32x16_bf16'


def w_reads(n):
    ks, dt = n // 4, n % 4
    off = ks * 4096 + (dt >> 1) * 1024
    a = AR(n)
    return ['ds_read_b64_tr_b16 %s, v%d offset:%d' % (ar(a, 2), 14 + (dt & 1), off),
            'ds_read_b64_tr_b16 %s, v%d offset:%d' % (ar(a + 2, 2), 14 + (dt & 1), off + 512)]


def coef_reads(kap):
    b = CF(kap & 1)
    o = kap * 64
    return ['ds_read_b128 %s, v18 offset:%d' % (vr(b, 4), o + 2048),
            'ds_read_b128 %s, v18 offset:%d' % (vr(b + 4, 4), o + 2064),
            'ds_read_b128 %s, v18 offset:%d' % (vr(b + 8, 4), o),
            'ds_read_b128 %s, v18 offset:%d' % (vr(b + 12, 4), o + 16)]


def affine(kap, cb, d):
    r = XR(kap, cb) + d
    b = CF(kap & 1)
    t = 24 + 2 * ((cb * 4 + d) & 3)
    return ['v_fma_mix_f32 v%d, v%d, v%d, v%d op_sel_hi:[1,0,0]' % (t, r, b + 2 * d, b + 8 + 2 * d),
            'v_fma_mix_f32 v%d, v%d, v%d, v%d op_sel:[1,0,0] op_sel_hi:[1,0,0]' % (t + 1, r, b + 2 * d + 1, b + 9 + 2 * d),
            'v_cvt_pk_bf16_f32 v%d, v%d, v%d' % (r, t, t + 1)]


def kv_dma():
    return [('s_mov_b32 m0, s37', 'buffer_load_dwordx4 v2, s[8:11], s41 offen lds'),
            (None, 'buffer_load_dwordx4 v2, s[8:11], s41 offen offset:1024 lds'),
            ('s_add_u32 m0, s37, %d' % KI, 'buffer_load_dwordx4 v3, s[8:11], s41 offen lds'),
            (None, 'buffer_load_dwordx4 v3, s[8:11], s41 offen offset:1024 lds'),
            ('s_mov_b32 m0, s38', 'buffer_load_dwordx4 v4, s[12:15], s36 offen lds'),
            (None, 'buffer_load_dwordx4 v5, s[12:15], s36 offen offset:1024 lds'),
            ('s_add_u32 m0, s38, %d' % VI, 'buffer_load_dwordx4 v4, s[12:15], s35 offen lds'),
            (None, 'buffer_load_dwordx4 v5, s[12:15], s35 offen offset:1024 lds')]


def q_loop(name, dma, niter):
    B = Prog()
    slots = [[] for _ in range(64)]
    for n in range(32):
        slots[(2 * n - 6) % 64] += w_reads(n)
    for ks in range(8):
        for i in range(8):
            slots[8 * ks + i] += affine(ks + 1, i // 4, i % 4)
        cr = coef_reads(ks + 2)
        for i in range(4):
            slots[8 * ks + 1 + 2 * i].append(cr[i])
        sx = 's39' if ks < 4 else 's40'
        for cb in range(2):
            slots[8 * ks + 2 + 4 * cb].append('buffer_load_dwordx4 %s, v%d, s[16:19], %s offen offset:%d'
                                               % (vr(XR(ks + 7, cb), 4), 16 + cb, sx, (ks & 3) * 1024))
    nvm = 14
    if dma:
        pieces = kv_dma()
        for p, (pre, d) in enumerate(pieces):
            s = 3 + 6 * p
            if pre:
                slots[s].append(pre)
            slots[s + 1].append(d)
        nvm += 8
    for s in range(64):
        if s == 0 and dma:
            B.e('s_add_u32 s37, s33, s42')
            B.e('s_add_u32 s38, s33, s43')
            B.e('s_add_u32 s35, s41, 8192')
            B.e('s_cmp_eq_u32 s33, 0')
            B.e('s_cselect_b32 s36, s35, s41')
        if s == 56:
            B.e('s_waitcnt vmcnt(%d)' % nvm)
            B.e('s_barrier')
        if s == 57:
            B.e('v_add_u32 v14, %d, v14' % RS)
            B.e('v_add_u32 v15, %d, v15' % RS)
        ks, dt, cb = s // 8, (s % 8) // 2, s % 2
        B.e('%s %s, %s, %s, %s' % (MF, vr(ACC(dt, cb), 16), ar(AR(4 * ks + dt), 4), vr(XR(ks, cb), 4), vr(ACC(dt, cb), 16)))
        for f in slots[s]:
            B.e(f)
    B.e('v_add_u32 v18, 512, v18')
    B.e('s_add_u32 s39, s39, 8192')
    B.e('s_add_u32 s40, s40, 8192')
    if dma:
        B.e('s_add_u32 s33, s33, %d' % RS)
        B.e('s_add_u32 s41, s41, 16384')
    B.e('s_sub_u32 s31, s31, 1')
    B.e('s_cmp_lg_u32 s31, 0')
    B.e('s_cbranch_scc1 %s' % name)
    return B


def att_frag_reads(n):
    half, m = n // 16, n % 16
    a = AR(n)
    if m < 8:
        ds = m
        return ['ds_read_b128 %s, v%d offset:%d' % (ar(a, 4), 10 + (ds & 1), half * KI + 64 * (ds >> 1))]
    ks, dt = (m - 8) // 4, (m - 8) % 4
    off = VOFF + half * VI + ks * 4096 + (dt >> 1) * 1024
    return ['ds_read_b64_tr_b16 %s, v%d offset:%d' % (ar(a, 2), 12 + (dt & 1), off),
            'ds_read_b64_tr_b16 %s, v%d offset:%d' % (ar(a + 2, 2), 12 + (dt & 1), off + 2048)]


def softmax_ops(half):
    res = []
    k = 0
    for ks in range(2):
        for cb in range(2):
            s0 = SB(half, cb) + 8 * ks
            p0 = PB(half, cb, ks)
            for i in range(8):
                a = ['v_exp_f32 v%d, v%d' % (s0 + i, s0 + i)]
                b = ['v_add_f32 v%d, v%d, v%d' % (20 + cb * 2 + (i & 1), 20 + cb * 2 + (i & 1), s0 + i)]
                if i & 1:
                    b.append('v_cvt_pk_bf16_f32 v%d, v%d, v%d' % (p0 + i // 2, s0 + i - 1, s0 + i))
                res.append((k, a, b))
                k += 1
    return res


def att_mfmas():
    mf = []
    for half in range(2):
        for ds in range(8):
            n = half * 16 + ds
            for cb in range(2):
                c = vr(NEG(cb), 16) if ds == 0 else vr(SB(half, cb), 16)
                mf.append('%s %s, %s, %s, %s' % (MF, vr(SB(half, cb), 16), ar(AR(n), 4), vr(XR(ds, cb), 4), c))
        pb = 1 - half
        for ks in range(2):
            for dt in range(4):
                n = half * 16 + 8 + ks * 4 + dt
                for cb in range(2):
                    mf.append('%s %s, %s, %s, %s' % (MF, ar(OA(dt, cb), 16), ar(AR(n), 4), vr(PB(pb, cb, ks), 4), ar(OA(dt, cb), 16)))
    return mf


SM0 = 18


def att_loop(name):
    B = Prog()
    slots = [[] for _ in range(64)]
    mf = att_mfmas()
    for n in range(32):
        slots[(2 * n - 6) % 64] += att_frag_reads(n)
    for half in range(2):
        for (k, a, b) in softmax_ops(half):
            slots[(32 * half + SM0 + k) % 64] += a
            slots[(32 * half + SM0 + k + 1) % 64] += b
    for p, (pre, d) in enumerate(kv_dma()):
        s = 3 + 6 * p
        if pre:
            slots[s].append(pre)
        slots[s + 1].append(d)
    for s in range(64):
        if s == 0:
            B.e('s_add_u32 s37, s33, s42')
            B.e('s_add_u32 s38, s33, s43')
            B.e('s_add_u32 s35, s41, 8192')
            B.e('s_mov_b32 s36, s41')
        if s == 56:
            B.e('s_waitcnt vmcnt(8)')
            B.e('s_barrier')
        if s == 49:
            B.e('s_add_u32 s32, s32, %d' % RS)
            B.e('s_cmp_ge_u32 s32, %d' % (4 * RS))
            B.e('s_cselect_b32 s32, 0, s32')
            B.e('v_add_u32 v10, s32, v6')
            B.e('v_add_u32 v11, s32, v7')
        if s == 57:
            B.e('v_add_u32 v12, s32, v8')
            B.e('v_add_u32 v13, s32, v9')
            B.e('s_add_u32 s33, s33, %d' % RS)
            B.e('s_cmp_ge_u32 s33, %d' % (4 * RS))
            B.e('s_cselect_b32 s33, 0, s33')
            B.e('s_add_u32 s41, s41, 16384')
        B.e(mf[s])
        for f in slots[s]:
            B.e(f)
    B.e('s_sub_u32 s31, s31, 1')
    B.e('s_cmp_lg_u32 s31, 0')
    B.e('s_cbranch_scc1 %s' % name)
    return B


def gen_k2(name='ada_attn_kernel', opt=None):
    opt = opt or {}
    P = Prog()
    pf = Prof(opt.get('prof', 0))
    P.e('s_cmp_ge_u32 s2, 256')
    P.e('s_cbranch_scc1 L_k2_end')
    pf.stamp(P)
    tl_start(P, opt.get('tl', 0))
    P.e('s_load_dwordx2 s[48:49], s[0:1], %d' % KA_K)
    P.e('s_load_dwordx2 s[50:51], s[0:1], %d' % KA_V)
    P.e('s_load_dwordx2 s[52:53], s[0:1], %d' % KA_WQ)
    P.e('s_load_dwordx2 s[54:55], s[0:1], %d' % KA_WS)
    wave_lane(P, 1, 28, 2)
    P.e('s_and_b32 s29, s2, 7')
    P.e('s_lshr_b32 s30, s2, 3')
    P.e('s_lshl_b32 s29, s29, 2')
    P.e('s_and_b32 s46, s30, 3')
    P.e('s_add_u32 s29, s29, s46')
    P.e('s_lshr_b32 s30, s30, 2')
    P.e('v_lshrrev_b32 v24, 3, v1')
    P.e('v_bfe_u32 v25, v1, 2, 1')
    P.e('v_bfe_u32 v26, v1, 4, 1')
    P.e('v_xor_b32 v25, v25, v26')
    P.e('v_and_b32 v26, 3, v1')
    P.e('v_lshlrev_b32 v26, 4, v26')
    P.e('v_lshl_add_u32 v26, v25, 6, v26')
    P.e('v_lshl_add_u32 v19, v24, 13, v26')
    P.e('v_lshl_add_u32 v5, v24, 8, v26')
    P.e('v_lshlrev_b32 v18, 4, v1')
    P.e('s_waitcnt lgkmcnt(0)')
    srd(P, 24, 54, WS_COEF, 4096)
    P.e('s_lshl_b32 s46, s29, 8')
    srd(P, 4, 52, 's46', 0x400000)
    P.e('s_sub_u32 s6, s6, s46')
    P.e('s_lshl_b32 s46, s28, 10')
    P.e('s_add_u32 m0, s46, %d' % COEF)
    P.e('buffer_load_dwordx4 v18, s[24:27], s46 offen lds')

    def w_region(R):
        for j in range(4):
            for dp in range(2):
                P.e('s_add_u32 m0, s44, %d' % (R * RS + j * 2048 + dp * (1024 - 128)))
                if dp == 0:
                    P.e('s_add_u32 s46, s45, %d' % ((16 * R + j) * 65536))
                P.e('buffer_load_dwordx4 v19, s[4:7], s46 offen offset:%d lds' % (128 * dp))
    P.e('s_lshl_b32 s44, s28, 13')
    P.e('s_lshl_b32 s45, s28, 18')
    w_region(0)
    srd(P, 16, 54, WS_XH, (2 << 20) + (64 << 10))
    P.e('s_lshl_b32 s46, s30, 3')
    P.e('s_lshl_b32 s47, s28, 1')
    P.e('s_add_u32 s46, s46, s47')
    P.e('s_lshl_b32 s34, s46, 18')
    P.e('s_lshl_b32 s47, s29, 13')
    P.e('s_add_u32 s34, s34, s47')
    P.e('s_lshl_b32 s47, s46, 15')
    P.e('v_lshlrev_b32 v16, 4, v1')
    P.e('v_add_u32 v16, s47, v16')
    P.e('v_add_u32 v17, 32768, v16')
    P.e('s_mov_b32 s39, 4096')
    for kap in range(7):
        for cb in range(2):
            P.e('buffer_load_dwordx4 %s, v%d, s[16:19], %s offen offset:%d'
                % (vr(XR(kap, cb), 4), 16 + cb, '0' if kap < 4 else 's39', (kap & 3) * 1024))
    for R in range(1, 4):
        w_region(R)
    P.e('s_lshl_b32 s46, s29, 19')
    P.e('s_add_u32 s47, s46, %d' % (1536 * 256))
    srd(P, 8, 48, 's47', 131072)
    P.e('s_add_u32 s47, s46, %d' % (1536 * 256 - 1024 - 8192))
    srd(P, 12, 50, 's47', 131072 + 1024 + 8192)
    srd(P, 20, 54, WS_O, 16 << 20)
    P.e('v_add_u32 v4, 1024, v5')
    P.e('v_add_u32 v5, 128, v5')
    P.e('v_lshrrev_b32 v24, 4, v1')
    P.e('v_and_b32 v25, 3, v1')
    P.e('v_xor_b32 v25, v25, v24')
    P.e('v_and_b32 v26, 12, v1')
    P.e('v_or_b32 v25, v25, v26')
    P.e('v_lshlrev_b32 v25, 4, v25')
    P.e('v_lshl_add_u32 v2, v24, 8, v25')
    P.e('v_add_u32 v3, 8192, v2')
    P.e('v_bfe_u32 v24, v1, 3, 2')
    P.e('v_mul_u32_u24 v6, 2112, v24')
    P.e('v_and_b32 v24, 7, v1')
    P.e('v_lshl_add_u32 v6, v24, 8, v6')
    P.e('v_lshrrev_b32 v24, 5, v1')
    P.e('v_and_b32 v25, 3, v1')
    P.e('v_xor_b32 v25, v25, v24')
    P.e('v_lshl_add_u32 v6, v25, 4, v6')
    P.e('v_xor_b32 v7, 32, v6')
    P.e('v_bfe_u32 v25, v1, 2, 2')
    P.e('v_lshlrev_b32 v26, 7, v25')
    P.e('v_bfe_u32 v25, v1, 3, 1')
    P.e('v_lshl_add_u32 v26, v25, 6, v26')
    P.e('v_bfe_u32 v25, v1, 4, 1')
    P.e('v_lshl_add_u32 v26, v25, 5, v26')
    P.e('v_and_b32 v25, 1, v1')
    P.e('v_lshl_add_u32 v26, v25, 4, v26')
    P.e('v_bfe_u32 v25, v1, 1, 1')
    P.e('v_lshl_add_u32 v26, v25, 3, v26')
    P.e('v_lshl_add_u32 v8, v24, 9, v26')
    P.e('v_xor_b32 v9, 64, v8')
    P.e('v_lshl_add_u32 v14, v24, 11, v26')
    P.e('v_xor_b32 v15, 64, v14')
    P.e('v_lshlrev_b32 v18, 5, v24')
    P.e('v_add_u32 v18, %d, v18' % COEF)
    for i in range(64, 192):
        P.e('v_mov_b32 v%d, 0' % i)
    P.e('s_mul_i32 s42, s28, 2112')
    P.e('s_lshl_b32 s43, s28, 11')
    P.e('s_mov_b32 s41, s43')
    P.e('s_add_u32 s43, s43, %d' % VOFF)
    P.e('s_mov_b32 s33, 0')
    P.e('s_mov_b32 s39, %d' % (7 * 1024))
    P.e('s_mov_b32 s40, %d' % (11 * 1024))
    P.e('s_mov_b32 s45, 0')
    P.e('s_waitcnt vmcnt(38)')
    P.e('s_barrier')
    pf.stamp(P)
    for f in coef_reads(0) + coef_reads(1):
        P.e(f)
    for n in range(3):
        for f in w_reads(n):
            P.e(f)
    for i in range(8):
        for f in affine(0, i // 4, i % 4):
            P.e(f)
    P.e('s_mov_b32 s31, 2')
    P.loop('L_k2_q1', q_loop('L_k2_q1', False, 2))
    pf.stamp(P)
    P.e('s_mov_b32 s31, 2')
    P.loop('L_k2_q2', q_loop('L_k2_q2', True, 2))
    pf.stamp(P)
    for ds in range(8):
        for cb in range(2):
            for i in range(4):
                s = ACC(ds >> 1, cb) + 8 * (ds & 1) + 2 * i
                P.e('v_cvt_pk_bf16_f32 v%d, v%d, v%d' % (XR(ds, cb) + i, s, s + 1))
    for i in range(32, 64):
        P.e('v_mov_b32 v%d, 0' % i)
    P.label('L_k2_init')
    P.e('s_mov_b32 s32, 0')
    P.e('s_mov_b32 s33, %d' % (2 * RS))
    P.e('s_lshl_b32 s41, s28, 11')
    P.e('s_add_u32 s41, s41, %d' % (2 * 16384))
    P.e('v_mov_b32 v10, v6')
    P.e('v_mov_b32 v11, v7')
    P.e('v_mov_b32 v12, v8')
    P.e('v_mov_b32 v13, v9')
    for n in range(3):
        for f in att_frag_reads(n):
            P.e(f)
    for i in range(128):
        P.e('v_accvgpr_write_b32 a%d, 0' % i)
    for i in range(20, 24):
        P.e('v_mov_b32 v%d, 0' % i)
    for (k, a, b) in softmax_ops(1):
        r = int(a[0].split()[1][1:-1])
        P.e('v_mov_b32 v%d, %s' % (r, '0' if k < 64 - (32 + SM0) else fhex(-1e30)))
    for i in range(PB(1, 0, 0), PB(1, 0, 0) + 16):
        P.e('v_mov_b32 v%d, 0' % i)
    P.e('s_mov_b32 s31, 8')
    pf.stamp(P)
    P.loop('L_k2_att', att_loop('L_k2_att'))
    pf.stamp(P)
    for n in range(8, 14):
        for f in att_frag_reads(n):
            P.e(f)
    sm = softmax_ops(1)
    k0 = 64 - (32 + SM0)
    for f in sm[k0 - 1][2]:
        P.e(f)
    for (k, a, b) in sm[k0:]:
        pass
    rest = sm[k0:]
    for i, (k, a, b) in enumerate(rest):
        for f in a:
            P.e(f)
        if i > 0:
            for f in rest[i - 1][2]:
                P.e(f)
    for f in rest[-1][2]:
        P.e(f)
    P.e('v_add_f32 v20, v20, v21')
    P.e('v_add_f32 v22, v22, v23')
    P.e('v_mov_b32 v21, v20')
    P.e('v_mov_b32 v23, v22')
    P.e('v_permlane32_swap_b32 v20, v21')
    P.e('v_permlane32_swap_b32 v22, v23')
    P.e('v_add_f32 v20, v20, v21')
    P.e('v_add_f32 v22, v22, v23')
    mf = att_mfmas()
    pv = mf[16:32]
    tail_fill = [[] for _ in range(16)]
    tail_fill[0] += att_frag_reads(14)
    tail_fill[2] += att_frag_reads(15)
    tail_fill[1] += ['v_min_f32 v24, v20, v22', 'v_max_f32 v25, v20, v22']
    tail_fill[3] += ['v_cmp_nle_f32 vcc, %s, v24' % fhex(2.0 ** -60), 'v_cmp_nge_f32 s[46:47], %s, v25' % 's48']
    tail_fill[2] += ['s_mov_b32 s48, %s' % fhex(2.0 ** 40)]
    tail_fill[4] += ['v_cmp_u_f32 s[50:51], v20, v22', 'v_rcp_f32 v20, v20', 'v_rcp_f32 v22, v22']
    tail_fill[6] += ['s_or_b64 vcc, vcc, s[46:47]', 's_or_b64 vcc, vcc, s[50:51]', 's_cmp_lg_u64 vcc, 0',
                     's_cselect_b32 s46, 1, 0', 'v_mov_b32 v24, s46', 's_lshl_b32 s46, s28, 2',
                     's_add_u32 s46, s46, %d' % FLAG, 'v_mov_b32 v25, s46',
                     'ds_write_b32 v25, v24']
    for i, m in enumerate(pv):
        P.e(m)
        for f in tail_fill[i]:
            P.e(f)
    P.e('s_waitcnt lgkmcnt(0)')
    P.e('s_barrier')
    P.e('v_mov_b32 v28, %d' % FLAG)
    P.e('ds_read_b128 v[24:27], v28')
    P.e('v_or_b32 v24, v24, v25')
    P.e('v_or_b32 v26, v26, v27')
    P.e('v_or_b32 v24, v24, v26')
    P.e('v_readfirstlane_b32 s46, v24')
    P.e('s_andn2_b32 s46, s46, s45')
    P.e('s_cmp_lg_u32 s46, 0')
    P.e('s_cbranch_scc1 L_k2_fallback')
    pf.stamp(P)
    P.e('v_lshlrev_b32 v24, 4, v1')
    P.e('v_add_u32 v24, s34, v24')
    P.e('v_add_u32 v25, 262144, v24')
    P.e('s_mov_b32 s46, 4096')
    for cb in range(2):
        for dt in range(4):
            for a in range(2):
                b = 64 + ((cb * 8 + dt * 2 + a) % 4) * 16
                for j in range(8):
                    P.e('v_accvgpr_read_b32 v%d, a%d' % (b + j, OA(dt, cb) + 8 * a + j))
                for j in range(8):
                    P.e('v_mul_f32 v%d, v%d, v%d' % (b + j, b + j, 20 + 2 * cb))
                for i in range(4):
                    P.e('v_cvt_pk_bf16_f32 v%d, v%d, v%d' % (b + 8 + i, b + 2 * i, b + 2 * i + 1))
                kap = 2 * dt + a
                P.e('buffer_store_dwordx4 %s, v%d, s[20:23], %s offen offset:%d%s'
                    % (vr(b + 8, 4), 24 + cb, '0' if kap < 4 else 's46', (kap & 3) * 1024,
                       stm(opt, 'st2')))
    if pf.on:
        P.e('s_waitcnt vmcnt(0)')
        pf.dump(P, opt.get('wg', 0), 'L_k2_pd')
    tl_end(P, opt.get('tl', 0), 1, 'L_k2_tl')
    P.e('s_endpgm')
    P.label('L_k2_fallback')
    F = Prog()
    F.e('s_mov_b32 s45, 1')
    F.e('v_mov_b32 v20, %s' % fhex(-3.0e38))
    F.e('v_mov_b32 v22, %s' % fhex(-3.0e38))
    F.e('v_add_u32 v10, %d, v6' % RS)
    F.e('v_add_u32 v11, %d, v7' % RS)
    F.e('s_lshl_b32 s41, s28, 11')
    F.e('s_mov_b32 s31, 16')
    M = Prog()
    M.e('s_barrier')
    M.e('s_add_u32 m0, s42, %d' % RS)
    M.e('buffer_load_dwordx4 v2, s[8:11], s41 offen lds')
    M.e('buffer_load_dwordx4 v2, s[8:11], s41 offen offset:1024 lds')
    M.e('s_waitcnt vmcnt(0)')
    M.e('s_barrier')
    for ds in range(8):
        M.e(att_frag_reads(ds)[0])
    for ds in range(8):
        for cb in range(2):
            c = '0' if ds == 0 else vr(SB(0, cb), 16)
            M.e('%s %s, %s, %s, %s' % (MF, vr(SB(0, cb), 16), ar(AR(ds), 4), vr(XR(ds, cb), 4), c))
    for cb in range(2):
        for i in range(16):
            M.e('v_max_f32 v%d, v%d, v%d' % (20 + 2 * cb, 20 + 2 * cb, SB(0, cb) + i))
    M.e('s_add_u32 s41, s41, 8192')
    M.e('s_sub_u32 s31, s31, 1')
    M.e('s_cmp_lg_u32 s31, 0')
    M.e('s_cbranch_scc1 L_k2_max')
    F.loop('L_k2_max', M)
    F.e('v_mov_b32 v21, v20')
    F.e('v_mov_b32 v23, v22')
    F.e('v_permlane32_swap_b32 v20, v21')
    F.e('v_permlane32_swap_b32 v22, v23')
    F.e('v_max_f32 v20, v20, v21')
    F.e('v_max_f32 v22, v22, v23')
    for i in range(16):
        F.e('v_sub_f32 v%d, 0, v20' % (NEG(0) + i))
        F.e('v_sub_f32 v%d, 0, v22' % (NEG(1) + i))
    F.e('s_barrier')
    F.e('s_lshl_b32 s41, s28, 11')
    for tp in range(2):
        F.e('s_add_u32 s37, s42, %d' % (tp * RS))
        F.e('s_add_u32 s38, s43, %d' % (tp * RS))
        F.e('s_add_u32 s35, s41, 8192')
        F.e('s_mov_b32 s36, %s' % ('s35' if tp == 0 else 's41'))
        for (pre, d) in kv_dma():
            if pre:
                F.e(pre)
            F.e(d)
        F.e('s_add_u32 s41, s41, 16384')
    F.e('s_waitcnt vmcnt(0)')
    F.e('s_barrier')
    F.fence()
    F.e('s_branch L_k2_init')
    st = State()
    P.items.append(('fence',))
    P.items += F.items
    P.label('L_k2_end')
    P.e('s_endpgm')
    t, d = kernel_text(name, P, 512, 256)
    return t, d, LDS_BYTES
```

```python
from common import *

MF = 'v_mfma_f32_32x32x16_bf16'
XP = 8
GA = 16
AB = lambda b, nt: 32 + 8 * (b & 1) + 4 * nt
ACC = lambda t: 64 + 16 * t
BR0 = 128


def wg_map(P, smb, snb, t0):
    P.e('s_and_b32 s%d, s2, 7' % t0)
    P.e('s_lshr_b32 s%d, s2, 3' % (t0 + 1))
    P.e('s_lshl_b32 s%d, s%d, 2' % (smb, t0))
    P.e('s_lshr_b32 s%d, s%d, 3' % (snb, t0 + 1))
    P.e('s_add_u32 s%d, s%d, s%d' % (smb, smb, snb))
    P.e('s_and_b32 s%d, s%d, 7' % (snb, t0 + 1))


def gemm(name, down, opt):
    opt = opt or {}
    D = opt.get('d5' if down else 'd3', 8)
    nks = 86 if down else 256
    nst = 22 if down else 64
    kidx = 4 if down else 2
    pre = 'L_k5' if down else 'L_k3'
    RR = max(D * 2048, 16384)
    BR = lambda j, cb: BR0 + 8 * (j % D) + 4 * cb
    tl = opt.get('tl', 0)
    pf = Prof(opt.get("prof", 0))
    P = Prog()
    P.e('s_cmp_ge_u32 s2, 256')
    P.e('s_cbranch_scc1 %s_end' % pre)
    pf.stamp(P)
    tl_start(P, tl)
    P.e('s_load_dwordx2 s[48:49], s[0:1], %d' % (KA_WD if down else KA_WO))
    P.e('s_load_dwordx2 s[50:51], s[0:1], %d' % KA_WS)
    P.e('s_load_dwordx2 s[52:53], s[0:1], %d' % (KA_OUT if down else KA_X))
    wave_lane(P, 1, 32, 2)
    wg_map(P, 33, 34, 40)
    mp = opt.get('map', 0)
    if mp == 1:
        P.e('s_mov_b32 s33, 0')
        P.e('s_mov_b32 s34, 0')
    elif mp == 2:
        P.e('s_and_b32 s33, s2, 7')
        P.e('s_lshl_b32 s33, s33, 2')
        P.e('s_and_b32 s34, s2, 7')
    elif mp == 3:
        P.e('s_mov_b32 s34, 0')
    elif mp == 4:
        P.e('s_and_b32 s33, s2, 7')
        P.e('s_lshl_b32 s33, s33, 2')
    elif mp == 5:
        P.e('s_add_u32 s34, s34, 2')
        P.e('s_and_b32 s34, s34, 7')
    P.e('v_lshrrev_b32 v8, 3, v1')
    P.e('v_bfe_u32 v9, v1, 2, 1')
    P.e('v_bfe_u32 v10, v1, 4, 1')
    P.e('v_xor_b32 v9, v9, v10')
    P.e('v_and_b32 v10, 3, v1')
    P.e('v_lshlrev_b32 v10, 4, v10')
    P.e('v_lshl_add_u32 v10, v9, 6, v10')
    P.e('v_lshl_add_u32 v2, v8, 10, v10')
    P.e('v_add_u32 v3, %d, v2' % (8192 - 1024))
    P.e('v_lshlrev_b32 v4, 4, v1')
    P.e('s_mul_i32 s35, s32, %d' % RR)
    P.e('s_mul_i32 s36, s32, %d' % (nst * 16384))
    P.e('s_lshl_b32 s40, s34, 7')
    P.e('s_add_u32 s36, s36, s40')
    P.e('s_mul_i32 s37, s32, %d' % (nst * 1024))
    P.e('s_mul_i32 s40, s33, %d' % (2 * nks * 1024))
    P.e('s_add_u32 s40, s40, 0x%x' % (WS_HH if down else WS_O))
    P.e('s_add_u32 s41, s40, %d' % (nks * 1024))
    P.e('s_waitcnt lgkmcnt(0)')
    srd(P, 4, 48, 0, (1376 if down else 4096) * 1024)
    srd(P, 8, 50, 's40', nks * 1024)
    srd(P, 12, 50, 's41', nks * 1024)

    def loads(j):
        r = ['s_add_u32 m0, s35, %d' % ((j % D) * 2048),
             'buffer_load_dwordx4 v2, s[4:7], s36 offen lds',
             'buffer_load_dwordx4 v3, s[4:7], s36 offen offset:1024 lds',
             'buffer_load_dwordx4 %s, v4, s[8:11], s37 offen' % vr(BR(j, 0), 4),
             'buffer_load_dwordx4 %s, v4, s[12:15], s37 offen' % vr(BR(j, 1), 4),
             's_add_u32 s36, s36, 16384',
             's_add_u32 s37, s37, 1024']
        ex = opt.get('exp', 0)
        if ex & 1:
            r = [x for x in r if ' lds' not in x]
        if ex & 2:
            r = [x for x in r if not ('buffer_load' in x and ' lds' not in x)]
        return r

    def reads(j):
        r = []
        o = (j % D) * 2048
        for nt in range(2):
            a = AB(j, nt)
            r.append('ds_read_b64_tr_b16 %s, v%d offset:%d' % (vr(a, 2), 5 + nt, o))
            r.append('ds_read_b64_tr_b16 %s, v%d offset:%d' % (vr(a + 2, 2), 5 + nt, o + 512))
        return r

    for j in range(D - 1):
        for f in loads(j):
            P.e(f)
    P.e('s_lshr_b32 s42, s32, 1')
    P.e('s_and_b32 s43, s32, 1')
    P.e('s_lshl_b32 s44, s33, 1')
    P.e('s_add_u32 s44, s44, s43')
    P.e('s_lshl_b32 s45, s34, 1')
    P.e('s_add_u32 s45, s45, s42')
    P.e('v_and_b32 v52, 31, v1')
    P.e('v_lshrrev_b32 v53, 5, v1')
    P.e('v_lshlrev_b32 v7, 10, v52')
    P.e('v_lshl_add_u32 v7, v53, 4, v7')
    P.e('s_lshl_b32 s46, s44, 15')
    P.e('s_lshl_b32 s47, s45, 6')
    P.e('s_add_u32 s46, s46, s47')
    P.e('s_lshl_b32 s39, s44, 15')
    P.e('s_lshl_b32 s47, s45, 11')
    P.e('s_add_u32 s39, s39, s47')
    srd(P, 16, 50, WS_X2, 2 << 20)
    srd(P, 24, 52, 0, 2 << 20)
    srd(P, 20, 50, WS_COEF + (5 if down else 2) * 2048, 2048)
    if down:
        for a in range(2):
            P.e('buffer_load_dwordx4 %s, v4, s[16:19], s39 offen offset:%d' % (vr(XP + 4 * a, 4), 1024 * a))
    else:
        for a in range(2):
            P.e('buffer_load_dwordx4 %s, v7, s[24:27], s46 offen offset:%d' % (vr(XP + 4 * a, 4), 32 * a))
        srd(P, 28, 50, WS_ST, 2048 * 128)
    P.e('v_lshlrev_b32 v48, 5, v53')
    P.e('s_lshl_b32 s47, s45, 7')
    for a in range(2):
        for h in range(2):
            P.e('buffer_load_dwordx4 %s, v48, s[20:23], s47 offen offset:%d' % (vr(GA + 8 * a + 4 * h, 4), 64 * a + 16 * h))
    NX = 6
    P.e('v_bfe_u32 v49, v1, 2, 2')
    P.e('v_lshlrev_b32 v50, 7, v49')
    P.e('v_bfe_u32 v49, v1, 3, 1')
    P.e('v_lshl_add_u32 v50, v49, 6, v50')
    P.e('v_bfe_u32 v49, v1, 4, 1')
    P.e('v_lshl_add_u32 v50, v49, 5, v50')
    P.e('v_and_b32 v49, 1, v1')
    P.e('v_lshl_add_u32 v50, v49, 4, v50')
    P.e('v_bfe_u32 v49, v1, 1, 1')
    P.e('v_lshl_add_u32 v50, v49, 3, v50')
    P.e('v_lshl_add_u32 v5, v53, 10, v50')
    P.e('v_add_u32 v5, s35, v5')
    P.e('v_xor_b32 v6, 64, v5')
    for i in range(64):
        P.e('v_mov_b32 v%d, 0' % (64 + i))
    P.e('s_waitcnt vmcnt(%d)' % (4 * (D - 2) + NX))
    pf.stamp(P)
    for f in reads(0):
        P.e(f)

    def step(B, j, wait, ld, rd=True):
        fill = [[], [], [], []]
        if rd:
            if wait is not None:
                fill[0].append('s_waitcnt vmcnt(%d)' % wait)
            fill[0] += reads(j + 1)
        if ld:
            l = loads(j + D - 1)
            fill[1] += l[0:3]
            fill[2] += l[3:]
        for m in range(4):
            nt, cb = m >> 1, m & 1
            B.e('%s %s, %s, %s, %s' % (MF, vr(ACC(m), 16), vr(AB(j, nt), 4), vr(BR(j, cb), 4), vr(ACC(m), 16)))
            for f in fill[m]:
                B.e(f)

    nld = nst - (D - 1)
    if down:
        for j in range(nst):
            if j == 0:
                w = 4 * (D - 3) + NX
            elif j < nld:
                w = 4 * (D - 3)
            else:
                w = max(0, 4 * (nst - 2 - j))
            if j == nld and False:
                pass
            if j > 0:
                w = 4 * (min(j + D - 2, nst - 1) - (j + 1))
            step(P, j, w if j + 1 < nst else None, j < nld, rd=(j + 1 < nst))
    else:
        nit = (nld - 1) // D
        step(P, 0, 4 * (D - 3) + NX, True)
        B = Prog()
        for jj in range(D):
            step(B, 1 + jj, 4 * (D - 3), True)
        B.e('s_sub_u32 s38, s38, 1')
        B.e('s_cmp_lg_u32 s38, 0')
        B.e('s_cbranch_scc1 %s_loop' % pre)
        P.e('s_mov_b32 s38, %d' % nit)
        P.loop('%s_loop' % pre, B)
        for j in range(1 + nit * D, nst):
            w = 4 * (min(j + D - 2, nst - 1) - (j + 1))
            step(P, j, w if j + 1 < nst else None, j < nld, rd=(j + 1 < nst))
    pf.stamp(P)
    P.e('v_add_u32 v48, s35, v4')
    for t in range(4):
        for q in range(4):
            P.e('ds_write_b128 v48, %s offset:%d' % (vr(ACC(t) + 4 * q, 4), t * 4096 + q * 1024))
    P.e('s_lshl_b32 s47, s32, 12')
    P.e('v_add_u32 v49, s47, v4')
    if RR > 16384:
        P.e('v_add_u32 v50, %d, v49' % (2 * RR))
    P.e('s_waitcnt lgkmcnt(0)')
    P.e('s_barrier')
    for s in range(4):
        for q in range(4):
            if RR > 16384:
                P.e('ds_read_b128 %s, v%d offset:%d' % (vr(64 + 16 * s + 4 * q, 4), 49 + (s >> 1), (s & 1) * RR + q * 1024))
            else:
                P.e('ds_read_b128 %s, v49 offset:%d' % (vr(64 + 16 * s + 4 * q, 4), s * RR + q * 1024))
    for i in range(16):
        P.e('v_add_f32 v%d, v%d, v%d' % (64 + i, 64 + i, 80 + i))
        P.e('v_add_f32 v%d, v%d, v%d' % (96 + i, 96 + i, 112 + i))
    for i in range(16):
        P.e('v_add_f32 v%d, v%d, v%d' % (64 + i, 64 + i, 96 + i))
    pf.stamp(P)
    for d in range(8):
        P.e('v_lshlrev_b32 v%d, 16, v%d' % (80 + 2 * d, XP + d))
        P.e('v_and_b32 v%d, 0xffff0000, v%d' % (81 + 2 * d, XP + d))
    for i in range(16):
        P.e('v_fma_f32 v%d, v%d, v%d, v%d' % (64 + i, 64 + i, GA + i, 80 + i))
    for d in range(8):
        P.e('v_cvt_pk_bf16_f32 v%d, v%d, v%d' % (96 + d, 64 + 2 * d, 65 + 2 * d))
    if down:
        for a in range(2):
            P.e('buffer_store_dwordx4 %s, v7, s[24:27], s46 offen offset:%d' % (vr(96 + 4 * a, 4), 32 * a))
    else:
        for a in range(2):
            P.e('buffer_store_dwordx4 %s, v4, s[16:19], s39 offen offset:%d' % (vr(96 + 4 * a, 4), 1024 * a))
        for d in range(8):
            P.e('v_lshlrev_b32 v%d, 16, v%d' % (64 + 2 * d, 96 + d))
            P.e('v_and_b32 v%d, 0xffff0000, v%d' % (65 + 2 * d, 96 + d))
        for st in (8, 4, 2, 1):
            src = 64 if st == 8 else 112
            for i in range(st):
                P.e('v_add_f32 v%d, v%d, v%d' % (112 + i, src + i, src + i + st))
        P.e('v_mov_b32 v113, v112')
        P.e('v_permlane32_swap_b32 v112, v113')
        P.e('v_add_f32 v112, v112, v113')
        P.e('v_mul_f32 v48, %s, v112' % fhex(1.0 / 32))
        for i in range(16):
            P.e('v_sub_f32 v%d, v%d, v48' % (64 + i, 64 + i))
        for i in range(8):
            P.e('v_mul_f32 v%d, v%d, v%d' % (112 + i, 64 + i, 64 + i))
        for i in range(8):
            P.e('v_fmac_f32 v%d, v%d, v%d' % (112 + i, 72 + i, 72 + i))
        for st in (4, 2, 1):
            for i in range(st):
                P.e('v_add_f32 v%d, v%d, v%d' % (112 + i, 112 + i, 112 + i + st))
        P.e('v_mov_b32 v113, v112')
        P.e('v_permlane32_swap_b32 v112, v113')
        P.e('v_add_f32 v49, v112, v113')
        P.e('v_and_b32 v50, 31, v1')
        P.e('v_lshlrev_b32 v50, 7, v50')
        P.e('s_lshl_b32 s47, s44, 12')
        P.e('s_lshl_b32 s41, s45, 3')
        P.e('s_add_u32 s47, s47, s41')
        P.e('v_cmp_gt_u32 vcc, 32, v1')
        P.e('s_and_saveexec_b64 s[40:41], vcc')
        P.e('buffer_store_dwordx2 v[48:49], v50, s[28:31], s47 offen')
    P.e('s_waitcnt vmcnt(0)')
    if pf.on:
        pf.dump(P, opt.get('wg', 0), pre + '_pd')
    tl_end(P, tl, kidx, pre + '_tl')
    P.label('%s_end' % pre)
    P.e('s_endpgm')
    nv = BR0 + 8 * D
    t, d = kernel_text(name, P, nv)
    return t, d, 4 * RR, 256


def gen_k3(name='ada_oproj_kernel', opt=None):
    return gemm(name, False, opt)


def gen_k5(name='ada_down_kernel', opt=None):
    return gemm(name, True, opt)
```

```python
from common import *
from k3 import wg_map
import math

MF = 'v_mfma_f32_32x32x16_bf16'
UOFF = 49152
IMG = 98304
LDS_BYTES = 163840
STG = 3072
AF = lambda b, i: 32 + 12 * (b & 1) + 4 * i
BF = lambda b, cb: 56 + 8 * (b & 1) + 4 * cb
ACC = lambda i, cb: 128 + (2 * i + cb) * 16
XF = lambda ks, cb: 64 + (2 * ks + cb) * 4
LOG2E = 1.4426950408889634


def a_reads(kk):
    slot, kl = (kk >> 1) & 3, kk & 1
    r = []
    for i in range(3):
        a = AF(kk, i)
        o = slot * STG + kl * 1536 + 32 * i
        r.append('ds_read_b64_tr_b16 %s, v8 offset:%d' % (vr(a, 2), o))
        r.append('ds_read_b64_tr_b16 %s, v9 offset:%d' % (vr(a + 2, 2), o))
    return r


def b_reads(kk):
    return ['ds_read_b128 %s, v10 offset:%d' % (vr(BF(kk, cb), 4), cb * 32768 + kk * 1024) for cb in range(2)]


def w_dma(slot):
    r = ['s_add_u32 m0, s35, %d' % (slot * STG)]
    for p in range(3):
        r.append('buffer_load_dwordx4 v%d, s[4:7], s36 offen offset:%d lds' % (2 + p, 1024 * p))
    r.append('s_add_u32 m0, s35, %d' % (UOFF + slot * STG))
    for p in range(3):
        r.append('buffer_load_dwordx4 v%d, s[8:11], s36 offen offset:%d lds' % (5 + p, 1024 * p))
    r.append('s_add_u32 s36, s36, %d' % (32 * 2752))
    return r


def gen_k4(name='ada_glu_kernel', opt=None):
    opt = opt or {}
    tl = opt.get('tl', 0)
    pf = Prof(opt.get('prof', 0))
    P = Prog()
    P.e('s_cmp_ge_u32 s2, 256')
    P.e('s_cbranch_scc1 L_k4_end')
    pf.stamp(P)
    tl_start(P, tl)
    P.e('s_load_dwordx2 s[48:49], s[0:1], %d' % KA_WG)
    P.e('s_load_dwordx2 s[50:51], s[0:1], %d' % KA_WU)
    P.e('s_load_dwordx2 s[52:53], s[0:1], %d' % KA_WS)
    wave_lane(P, 1, 32, 2)
    wg_map(P, 33, 34, 40)
    P.e('s_lshl_b32 s37, s34, 2')
    P.e('s_add_u32 s37, s37, s32')
    P.e('v_lshlrev_b32 v11, 4, v1')
    P.e('v_lshrrev_b32 v12, 5, v1')
    P.e('v_and_b32 v13, 31, v1')
    P.e('s_waitcnt lgkmcnt(0)')
    srd(P, 12, 52, WS_X2, 2 << 20)
    srd(P, 16, 52, WS_ST, 2048 * 128)
    srd(P, 20, 52, WS_COEF + 3 * 2048, 4096)
    P.e('s_lshl_b32 s40, s33, 16')
    P.e('s_lshl_b32 s41, s32, 13')
    P.e('s_add_u32 s40, s40, s41')
    P.e('s_add_u32 s41, s40, 4096')
    P.e('s_add_u32 s42, s40, 32768')
    P.e('s_add_u32 s43, s42, 4096')
    P.e('v_lshlrev_b32 v14, 7, v13')
    P.e('v_lshl_add_u32 v14, v12, 6, v14')
    P.e('s_lshl_b32 s44, s33, 13')
    for cb in range(2):
        for t in range(4):
            P.e('buffer_load_dwordx4 %s, v14, s[16:19], s44 offen offset:%d' % (vr(128 + 16 * cb + 4 * t, 4), 16 * t))
        if cb == 0:
            P.e('s_add_u32 s44, s44, 4096')
    P.e('s_lshr_b32 s45, s32, 1')
    P.e('s_mul_i32 s45, s45, %d' % UOFF)
    P.e('s_and_b32 s46, s32, 1')
    P.e('s_lshl_b32 s46, s46, 10')
    P.e('s_add_u32 s45, s45, s46')
    P.e('s_add_u32 m0, s45, %d' % (3 * STG))
    P.e('s_lshl_b32 s46, s32, 10')
    P.e('buffer_load_dwordx4 v11, s[20:23], s46 offen lds')
    for ks in range(8):
        for cb in range(2):
            P.e('buffer_load_dwordx4 %s, v11, s[12:15], s%d offen offset:%d'
                % (vr(XF(ks, cb), 4), 40 + 2 * cb + (ks >> 2), (ks & 3) * 1024))
    srd(P, 4, 48, 0, 512 * 2752)
    srd(P, 8, 50, 0, 512 * 2752)
    for p in range(3):
        P.e('v_add_u32 v15, %d, v1' % (64 * p))
        P.e('v_mul_u32_u24 v16, 43691, v15')
        P.e('v_lshrrev_b32 v16, 18, v16')
        P.e('v_mul_u32_u24 v17, 6, v16')
        P.e('v_sub_u32 v17, v15, v17')
        P.e('v_lshlrev_b32 v17, 4, v17')
        P.e('v_subrev_u32 v17, %d, v17' % (1024 * p)) if p else None
        P.e('v_mul_u32_u24 v18, 2752, v16')
        P.e('v_add_u32 v%d, v18, v17' % (2 + p))
        P.e('v_xor_b32 v16, 4, v16')
        P.e('v_mul_u32_u24 v18, 2752, v16')
        P.e('v_add_u32 v%d, v18, v17' % (5 + p))
    P.e('s_mul_i32 s35, s32, %d' % (4 * STG))
    P.e('s_mul_i32 s36, s37, 96')
    for S in range(3):
        for f in w_dma(S):
            P.e(f)
    pf.stamp(P)
    P.e('v_bfe_u32 v15, v1, 2, 2')
    P.e('v_lshl_add_u32 v15, v12, 3, v15')
    P.e('v_mul_u32_u24 v16, 96, v15')
    P.e('v_and_b32 v15, 1, v1')
    P.e('v_lshl_add_u32 v16, v15, 4, v16')
    P.e('v_bfe_u32 v15, v1, 1, 1')
    P.e('v_lshl_add_u32 v16, v15, 3, v16')
    P.e('v_add_u32 v16, s35, v16')
    P.e('v_bfe_u32 v15, v1, 4, 1')
    P.e('v_mul_u32_u24 v17, %d, v15' % (UOFF + 384))
    P.e('v_add_u32 v8, v16, v17')
    P.e('v_mul_u32_u24 v17, %d, v15' % (UOFF - 384))
    P.e('v_add_u32 v9, v16, v17')
    P.e('v_add_u32 v9, 384, v9')
    P.e('v_add_u32 v10, %d, v11' % IMG)
    for cb in range(2):
        b = 128 + 16 * cb
        mu, rs = 20 + 4 * cb, 22 + 4 * cb
        P.e('v_add_f32 v28, v%d, v%d' % (b, b + 2))
        P.e('v_add_f32 v29, v%d, v%d' % (b + 4, b + 6))
        P.e('v_add_f32 v30, v%d, v%d' % (b + 8, b + 10))
        P.e('v_add_f32 v31, v%d, v%d' % (b + 12, b + 14))
        P.e('v_add_f32 v28, v28, v29')
        P.e('v_add_f32 v30, v30, v31')
        P.e('v_add_f32 v28, v28, v30')
        P.e('v_mov_b32 v29, v28')
        P.e('v_permlane32_swap_b32 v28, v29')
        P.e('v_add_f32 v28, v28, v29')
        P.e('v_mul_f32 v28, 0x3d800000, v28')
        for i in range(8):
            P.e('v_sub_f32 v%d, v%d, v28' % (b + 2 * i, b + 2 * i))
        P.e('v_mul_f32 v29, v%d, v%d' % (b, b))
        for i in range(1, 8):
            P.e('v_fmac_f32 v29, v%d, v%d' % (b + 2 * i, b + 2 * i))
        P.e('v_add_f32 v30, v%d, v%d' % (b + 1, b + 3))
        for i in range(2, 8):
            P.e('v_add_f32 v30, v30, v%d' % (b + 2 * i + 1))
        P.e('v_fmac_f32 v30, 0x42000000, v29')
        P.e('v_mov_b32 v29, v30')
        P.e('v_permlane32_swap_b32 v30, v29')
        P.e('v_add_f32 v30, v30, v29')
        P.e('v_mov_b32 v29, %s' % fhex(1e-5))
        P.e('v_fmac_f32 v29, %s, v30' % fhex(1.0 / 512))
        P.e('v_rsq_f32 v%d, v29' % rs)
        P.e('v_mul_f32 v%d, v28, v%d' % (mu, rs))
        P.e('v_sub_f32 v%d, 0, v%d' % (mu, mu))
    P.e('s_waitcnt vmcnt(%d)' % (16 + 18))
    P.e('s_barrier')
    P.e('s_lshl_b32 s45, s32, 9')
    P.e('v_lshlrev_b32 v15, 5, v12')
    P.e('v_add_u32 v15, s45, v15')
    P.e('v_add_u32 v15, %d, v15' % (3 * STG))
    P.e('s_lshl_b32 s45, s32, 13')
    P.e('v_add_u32 v16, s45, v10')
    CB = lambda ks: 160 + 16 * (ks & 1)

    def coef(ks):
        c = CB(ks)
        return ['ds_read_b128 %s, v15 offset:%d' % (vr(c, 4), UOFF + 64 * ks),
                'ds_read_b128 %s, v15 offset:%d' % (vr(c + 4, 4), UOFF + 64 * ks + 16),
                'ds_read_b128 %s, v15 offset:%d' % (vr(c + 8, 4), 64 * ks),
                'ds_read_b128 %s, v15 offset:%d' % (vr(c + 12, 4), 64 * ks + 16)]
    for f in coef(0):
        P.e(f)
    for ks in range(8):
        if ks < 7:
            for f in coef(ks + 1):
                P.e(f)
        c = CB(ks)
        for cb in range(2):
            x = XF(ks, cb)
            t0 = 192 + 8 * cb
            for d in range(4):
                P.e('v_lshlrev_b32 v%d, 16, v%d' % (t0 + 2 * d, x + d))
                P.e('v_and_b32 v%d, 0xffff0000, v%d' % (t0 + 2 * d + 1, x + d))
            for d in range(4):
                P.e('v_pk_fma_f32 %s, %s, %s, %s op_sel_hi:[1,0,0]' % (vr(t0 + 2 * d, 2), vr(t0 + 2 * d, 2), vr(22 + 4 * cb, 2), vr(20 + 4 * cb, 2)))
            for d in range(4):
                P.e('v_pk_fma_f32 %s, %s, %s, %s' % (vr(t0 + 2 * d, 2), vr(t0 + 2 * d, 2), vr(c + 2 * d, 2), vr(c + 8 + 2 * d, 2)))
            for d in range(4):
                P.e('v_cvt_pk_bf16_f32 v%d, v%d, v%d' % (x + d, t0 + 2 * d, t0 + 2 * d + 1))
            P.e('ds_write_b128 v16, %s offset:%d' % (vr(x, 4), cb * 32768 + ks * 1024))
    P.e('s_waitcnt lgkmcnt(0)')
    P.e('s_barrier')
    pf.stamp(P)
    P.e('s_cmp_ge_u32 s37, 29')
    P.e('s_cbranch_scc1 L_k4_done')
    for i in range(96):
        P.e('v_mov_b32 v%d, 0' % (128 + i))
    P.e('s_waitcnt vmcnt(12)')
    for f in a_reads(0) + b_reads(0):
        P.e(f)
    B = Prog()
    for kk in range(8):
        t, kl = kk >> 1, kk & 1
        fill = [[] for _ in range(6)]
        rd = a_reads(kk + 1)
        bd = b_reads(kk + 1)
        if kl == 1:
            fill[0].append('s_waitcnt vmcnt(12)')
        fill[0] += [bd[0], rd[0], rd[1]]
        fill[1] += [bd[1], rd[2], rd[3]]
        fill[2] += [rd[4], rd[5]]
        if kl == 0:
            d = w_dma((t + 3) & 3)
            fill[1] += d[0:2]
            fill[2] += d[2:3]
            fill[3] += d[3:6]
            fill[4] += d[6:7]
            fill[5] += d[7:]
        for m in range(6):
            i, cb = m >> 1, m & 1
            B.e('%s %s, %s, %s, %s' % (MF, vr(ACC(i, cb), 16), vr(AF(kk, i), 4), vr(BF(kk, cb), 4), vr(ACC(i, cb), 16)))
            for f in fill[m]:
                B.e(f)
    B.e('v_add_u32 v10, 8192, v10')
    B.e('s_sub_u32 s38, s38, 1')
    B.e('s_cmp_lg_u32 s38, 0')
    B.e('s_cbranch_scc1 L_k4_loop')
    P.e('s_mov_b32 s38, 4')
    P.loop('L_k4_loop', B)
    pf.stamp(P)
    P.e('s_mul_i32 s40, s33, %d' % (2 * 86 * 1024))
    P.e('s_add_u32 s40, s40, 0x%x' % WS_HH)
    P.e('s_add_u32 s41, s40, %d' % (86 * 1024))
    srd(P, 12, 52, 's40', 86 * 1024)
    srd(P, 16, 52, 's41', 86 * 1024)
    P.e('s_mul_i32 s42, s37, 3072')
    c = -2.0 * math.sqrt(2.0 / math.pi) * LOG2E
    P.e('s_mov_b32 s43, %s' % fhex(c))
    P.e('v_mov_b32 v20, %s' % fhex(c * 0.044715))
    for i in range(3):
        for cb in range(2):
            a = ACC(i, cb)
            t = 32 + 16 * ((2 * i + cb) & 1)
            for j in range(8):
                P.e('v_mul_f32 v%d, v%d, v%d' % (t + j, a + j, a + j))
            for j in range(8):
                P.e('v_fma_f32 v%d, v%d, v20, s43' % (t + j, t + j))
            for j in range(8):
                P.e('v_mul_f32 v%d, v%d, v%d' % (t + j, t + j, a + j))
            for j in range(8):
                P.e('v_exp_f32 v%d, v%d' % (t + j, t + j))
            for j in range(8):
                P.e('v_mul_f32 v%d, v%d, v%d' % (a + j, a + j, a + 8 + j))
            for j in range(8):
                P.e('v_add_f32 v%d, 1.0, v%d' % (t + j, t + j))
            for j in range(8):
                P.e('v_rcp_f32 v%d, v%d' % (t + j, t + j))
            for j in range(8):
                P.e('v_mul_f32 v%d, v%d, v%d' % (a + j, a + j, t + j))
            for j in range(4):
                P.e('v_cvt_pk_bf16_f32 v%d, v%d, v%d' % (t + 8 + j, a + 2 * j, a + 2 * j + 1))
            P.e('buffer_store_dwordx4 %s, v11, s[%d:%d], s42 offen offset:%d' % (vr(t + 8, 4), 12 + 4 * cb, 15 + 4 * cb, 1024 * i))
    P.label('L_k4_done')
    P.e('s_waitcnt vmcnt(0)')
    if pf.on:
        pf.dump(P, opt.get('wg', 0), 'L_k4_pd')
    tl_end(P, tl, 3, 'L_k4_tl')
    P.label('L_k4_end')
    P.e('s_endpgm')
    t, d = kernel_text(name, P, 256)
    return t, d, LDS_BYTES
```

```python
import sys, importlib
sys.path.insert(0, 'gen')
from common import *

HEADER = open('adaLN_cond__sliding_block_cached__glu_gated_geglu__prompt.s.ref').read().split('; Override launch geometry')[0]


def assemble_file(kernels, notes=''):
    out = HEADER
    out += notes
    for (name, text, desc, grid, block, lds) in kernels:
        out += '; @launch kernel=%s grid=(%d,1,1) block=(%d,1,1) lds=%d\n' % (name, grid, block, lds)
    out += '.amdgcn_target "amdgcn-amd-amdhsa--gfx950"\n'
    for k in kernels:
        out += k[1]
    for k in kernels:
        out += k[2]
    return out


if __name__ == '__main__':
    import argparse
    ap = argparse.ArgumentParser()
    ap.add_argument('-o', default='full.s')
    ap.add_argument('-k', default='0')
    ap.add_argument('--opt', default='')
    a = ap.parse_args()
    opt = {}
    for kv in a.opt.split(','):
        if kv:
            k, v = kv.split('=')
            opt[k] = int(v)
    ks = []
    for k in a.k.split(','):
        if k == '0':
            import k0
            t, d = k0.gen_k0(opt=opt)
            ks.append(('ada_prep_kernel', t, d, 160 + (opt.get('npf', 96) if opt.get('pf', 0) else 0), 256, 8192))
        elif k == '2':
            import k2
            t, d, lds = k2.gen_k2(opt=opt)
            ks.append(('ada_attn_kernel', t, d, 256, 256, lds))
        elif k == '3':
            import k3
            t, d, lds, grid = k3.gen_k3(opt=opt)
            ks.append(('ada_oproj_kernel', t, d, grid, 256, lds))
        elif k == '4':
            import k4
            t, d, lds = k4.gen_k4(opt=opt)
            ks.append(('ada_glu_kernel', t, d, 256, 256, lds))
        elif k == '5':
            import k3
            t, d, lds, grid = k3.gen_k5(opt=opt)
            ks.append(('ada_down_kernel', t, d, grid, 256, lds))
    notes = open('notes.txt').read() if len(ks) == 5 else ''
    s = assemble_file(ks, notes)
    open(a.o, 'w').write(s)
    print('wrote', a.o, len(s), 'bytes')
```

```python
from common import *

LOG2E = 1.4426950408889634


def gen_k0(name='ada_prep_kernel', opt=None):
    opt = opt or {}
    tl = opt.get('tl', 0)
    P = Prog()
    END = 'L_k0_end'
    pfm = opt.get('pf', 0)
    npf = opt.get('npf', 96)
    P.e('s_cmp_ge_u32 s2, %d' % (160 + (npf if pfm else 0)))
    P.e('s_cbranch_scc1 %s' % END)
    if pfm:
        P.e('s_cmp_ge_u32 s2, 160')
        P.e('s_cbranch_scc1 L_k0_pf')
    tl_start(P, tl)
    if opt.get('cpf', 0):
        code_prefetch(P, opt.get('cpf'))
    P.e('s_load_dwordx2 s[4:5], s[0:1], %d' % KA_X)
    P.e('s_load_dwordx2 s[6:7], s[0:1], %d' % KA_C)
    P.e('s_load_dwordx2 s[8:9], s[0:1], %d' % KA_WMOD)
    P.e('s_load_dwordx2 s[10:11], s[0:1], %d' % KA_WS)
    wave_lane(P, 1, 12, 2)
    P.e('s_cmp_ge_u32 s2, 96')
    P.e('s_cbranch_scc1 L_k0_ln')
    P.e('s_waitcnt lgkmcnt(0)')
    G = Prog()
    srd(G, 16, 6, 0, 1024)
    srd(G, 20, 8, 0, 512 * 6144)
    srd(G, 24, 10, WS_COEF, 3072 * 4)
    G.e('s_and_b32 s13, s2, 7')
    G.e('s_lshl_b32 s13, s13, 1')
    G.e('s_bfe_u32 s14, s2, 0x10003')
    G.e('s_add_u32 s13, s13, s14')
    G.e('s_lshr_b32 s14, s2, 4')
    G.e('s_lshl_b32 s14, s14, 4')
    G.e('s_add_u32 s13, s13, s14')
    G.e('v_lshrrev_b32 v2, 2, v0')
    G.e('v_and_b32 v3, 3, v0')
    G.e('v_mul_u32_u24 v4, 6144, v2')
    G.e('v_lshl_add_u32 v4, v3, 4, v4')
    G.e('v_lshlrev_b32 v5, 1, v2')
    G.e('s_lshl_b32 s28, s13, 6')
    for i in range(8):
        G.e('buffer_load_ushort v%d, v5, s[16:19], 0 offen offset:%d' % (8 + i, 128 * i))
    for i in range(8):
        G.e('buffer_load_dwordx4 %s, v4, s[20:23], s28 offen' % vr(32 + 4 * i, 4))
        if i < 7:
            G.e('s_add_u32 s28, s28, %d' % (64 * 6144))
    G.e('s_lshr_b32 s14, s13, 4')
    G.e('s_cmp_eq_u32 s14, 1')
    G.e('s_cselect_b32 s15, 1, 0')
    G.e('s_cmp_eq_u32 s14, 4')
    G.e('s_cselect_b32 s15, 1, s15')
    G.e('s_cmp_lg_u32 s15, 0')
    G.e('s_cselect_b32 s15, 0x3f800000, 0')
    G.e('s_cmp_le_u32 s14, 1')
    G.e('s_cselect_b32 s29, %s, 0x3f800000' % fhex(C0))
    for i in range(8):
        c = 8 + i
        G.e('v_lshlrev_b32 v%d, 16, v%d' % (c, c))
        G.e('v_mul_f32 v16, %s, v%d' % (fhex(-LOG2E), c))
        G.e('v_exp_f32 v16, v16')
        G.e('v_add_f32 v16, 1.0, v16')
        G.e('v_rcp_f32 v16, v16')
        G.e('v_mul_f32 v%d, v%d, v16' % (c, c))
        round_bf16(G, c, c)
    for j in range(8):
        G.e('v_mov_b32 v%d, 0' % (20 + j))
    for i in range(8):
        for d in range(4):
            w = 32 + 4 * i + d
            G.e('v_lshlrev_b32 v16, 16, v%d' % w)
            G.e('v_and_b32 v17, 0xffff0000, v%d' % w)
            G.e('v_fmac_f32 v%d, v%d, v16' % (20 + 2 * d, 8 + i))
            G.e('v_fmac_f32 v%d, v%d, v17' % (21 + 2 * d, 8 + i))
    G.e('v_lshlrev_b32 v6, 7, v2')
    G.e('v_lshl_add_u32 v6, v3, 5, v6')
    G.e('ds_write_b128 v6, v[20:23]')
    G.e('ds_write_b128 v6, v[24:27] offset:16')
    G.e('v_lshrrev_b32 v6, 5, v0')
    G.e('v_and_b32 v7, 31, v0')
    G.e('v_lshlrev_b32 v6, 10, v6')
    G.e('v_lshl_add_u32 v6, v7, 2, v6')
    G.e('s_waitcnt lgkmcnt(0)')
    G.e('s_barrier')
    for p in range(8):
        G.e('ds_read_b32 v%d, v6 offset:%d' % (32 + p, 128 * p))
    for st in (4, 2, 1):
        for p in range(st):
            G.e('v_add_f32 v%d, v%d, v%d' % (32 + p, 32 + p, 32 + p + st))
    G.e('s_waitcnt lgkmcnt(0)')
    G.e('s_barrier')
    G.e('v_lshlrev_b32 v6, 2, v0')
    G.e('ds_write_b32 v6, v32')
    G.e('s_waitcnt lgkmcnt(0)')
    G.e('s_barrier')
    G.e('s_cmp_ge_u32 s12, 1')
    G.e('s_cbranch_scc1 %s' % END)
    G.e('v_lshlrev_b32 v6, 2, v7')
    for p in range(8):
        G.e('ds_read_b32 v%d, v6 offset:%d' % (32 + p, 128 * p))
    for st in (4, 2, 1):
        for p in range(st):
            G.e('v_add_f32 v%d, v%d, v%d' % (32 + p, 32 + p, 32 + p + st))
    round_bf16(G, 32, 32)
    G.e('v_add_f32 v32, s15, v32')
    round_bf16(G, 32, 32)
    G.e('v_mul_f32 v32, s29, v32')
    G.e('s_lshl_b32 s28, s13, 7')
    G.e('v_cmp_gt_u32 vcc, 32, v1')
    G.e('s_and_saveexec_b64 s[30:31], vcc')
    G.e('buffer_store_dword v32, v6, s[24:27], s28 offen')
    tl_end(G, tl, 0, 'L_k0_tl1')
    G.e('s_endpgm')
    P.items += G.items
    P.label('L_k0_ln')
    L = Prog()
    L.e('s_waitcnt lgkmcnt(0)')
    srd(L, 16, 4, 0, 2048 * 1024)
    srd(L, 20, 10, WS_XH, 2 << 20)
    L.e('s_sub_u32 s13, s2, 96')
    L.e('v_and_b32 v2, 31, v1')
    L.e('v_lshrrev_b32 v3, 5, v1')
    L.e('v_lshlrev_b32 v4, 10, v2')
    L.e('v_lshl_add_u32 v4, v3, 4, v4')
    L.e('s_lshl_b32 s28, s13, 15')
    L.e('s_lshl_b32 s29, s12, 8')
    L.e('s_add_u32 s28, s28, s29')
    for i in range(8):
        L.e('buffer_load_dwordx4 %s, v4, s[16:19], s28 offen offset:%d' % (vr(32 + 4 * i, 4), 32 * i))
    for i in range(32):
        L.e('v_lshlrev_b32 v%d, 16, v%d' % (64 + 2 * i, 32 + i))
        L.e('v_and_b32 v%d, 0xffff0000, v%d' % (65 + 2 * i, 32 + i))

    def reduce_rows(src0, dst, slot):
        for a in range(4):
            L.e('v_add_f32 v%d, v%d, v%d' % (8 + a, src0 + a, src0 + 4 + a))
        for i in range(2, 16):
            for a in range(4):
                L.e('v_add_f32 v%d, v%d, v%d' % (8 + a, 8 + a, src0 + 4 * i + a))
        L.e('v_add_f32 v8, v8, v9')
        L.e('v_add_f32 v10, v10, v11')
        L.e('v_add_f32 v8, v8, v10')
        L.e('ds_write_b32 v5, v8 offset:%d' % slot)
        L.e('s_waitcnt lgkmcnt(0)')
        L.e('s_barrier')
        L.e('ds_read_b128 v[8:11], v6 offset:%d' % slot)
        L.e('ds_read_b128 v[12:15], v6 offset:%d' % (slot + 16))
        for a in range(4):
            L.e('v_add_f32 v%d, v%d, v%d' % (8 + a, 8 + a, 12 + a))
        L.e('v_add_f32 v8, v8, v9')
        L.e('v_add_f32 v10, v10, v11')
        L.e('v_add_f32 v%d, v8, v10' % dst)

    L.e('v_lshlrev_b32 v6, 5, v2')
    L.e('s_lshl_b32 s29, s12, 3')
    L.e('v_lshl_add_u32 v5, v3, 2, v6')
    L.e('v_add_u32 v5, s29, v5')
    reduce_rows(64, 24, 0)
    L.e('v_mul_f32 v24, %s, v24' % fhex(1.0 / 512))
    for i in range(64):
        L.e('v_sub_f32 v%d, v%d, v24' % (64 + i, 64 + i))
    for i in range(64):
        L.e('v_mul_f32 v%d, v%d, v%d' % (128 + i, 64 + i, 64 + i))
    reduce_rows(128, 25, 1024)
    L.e('v_mov_b32 v26, %s' % fhex(1e-5))
    L.e('v_fmac_f32 v26, %s, v25' % fhex(1.0 / 512))
    L.e('v_rsq_f32 v26, v26')
    for i in range(64):
        L.e('v_mul_f32 v%d, v%d, v26' % (64 + i, 64 + i))
    for i in range(32):
        L.e('v_cvt_pk_f16_f32 v%d, v%d, v%d' % (32 + i, 64 + 2 * i, 65 + 2 * i))
    L.e('v_lshlrev_b32 v4, 4, v1')
    L.e('s_lshl_b32 s28, s13, 15')
    L.e('s_lshl_b32 s29, s12, 13')
    L.e('s_add_u32 s28, s28, s29')
    for i in range(8):
        if i == 4:
            L.e('s_add_u32 s28, s28, 4096')
        L.e('buffer_store_dwordx4 %s, v4, s[20:23], s28 offen offset:%d' % (vr(32 + 4 * i, 4), 1024 * (i & 3)))
    tl_end(L, tl, 0, 'L_k0_tl2')
    P.items += L.items
    if pfm:
        L.e('s_endpgm') if False else None
        P.e('s_endpgm')
        P.label('L_k0_pf')
        Q = Prog()
        bufs = []
        if pfm & 4: bufs.append((KA_WQ, 0, 512 * 8192, 1))
        if pfm & 8:
            bufs.append((KA_K, 1536 * 256, 131072, 32))
            bufs.append((KA_V, 1536 * 256, 131072, 32))
        if pfm & 1: bufs.append((KA_WO, 0, 4096 * 1024, 1))
        if pfm & 2:
            bufs += [(KA_WG, 0, 512 * 2752, 1), (KA_WU, 0, 512 * 2752, 1), (KA_WD, 0, 1376 * 1024, 1)]
        for i, b in enumerate(bufs):
            Q.e('s_load_dwordx2 s[%d:%d], s[0:1], %d' % (40 + 2 * i, 41 + 2 * i, b[0]))
        Q.e('s_sub_u32 s3, s2, 160')
        Q.e('s_lshl_b32 s3, s3, 12')
        Q.e('v_lshlrev_b32 v1, 4, v0')
        Q.e('v_add_u32 v1, s3, v1')
        Q.e('s_waitcnt lgkmcnt(0)')
        step = npf * 4096
        r = 0
        for i, (ka, off, nb, rep) in enumerate(bufs):
            if rep == 1:
                srd(Q, 16, 40 + 2 * i, off, nb)
                n = (nb + step - 1) // step
                for j in range(n):
                    Q.e('s_mov_b32 s20, %d' % (j * step))
                    Q.e('buffer_load_dwordx4 %s, v1, s[16:19], s20 offen' % vr(8 + 4 * (r % 40), 4))
                    r += 1
            else:
                srd(Q, 16, 40 + 2 * i, off, 32 * 524288 - off)
                n = (32 * 131072 + step - 1) // step
                for j in range(n):
                    Q.e('v_add_u32 v2, %d, v1' % (j * step))
                    Q.e('v_lshrrev_b32 v3, 17, v2')
                    Q.e('v_and_b32 v2, 0x1ffff, v2')
                    Q.e('v_lshl_add_u32 v2, v3, 19, v2')
                    Q.e('buffer_load_dwordx4 %s, v2, s[16:19], 0 offen' % vr(8 + 4 * (r % 40), 4))
                    r += 1
        Q.e('s_waitcnt vmcnt(0)')
        P.items += Q.items
    P.label(END)
    P.e('s_endpgm')
    return kernel_text(name, P, 192)
```

```python
import sys
sys.path.insert(0, 'gen')
from asmlib import *

KA_X, KA_K, KA_V, KA_WQ, KA_WO, KA_BX, KA_WG, KA_WU, KA_WD, KA_C, KA_WMOD, KA_OUT, KA_DBG, KA_WS = [8 * i for i in range(14)]

WS_COEF = 0x0000000
WS_XH = 0x0100000
WS_O = 0x0400000
WS_X2 = 0x1400000
WS_X2A = 0x1600000
WS_ST = 0x1800000
WS_S12 = 0x1900000
WS_HH = 0x1A00000

SRD3 = '0x00020000'
import math
C0 = math.log2(math.e) / math.sqrt(128.0)


def rng(c, b, n):
    return '%s[%d:%d]' % (c, b, b + n - 1) if n > 1 else '%s%d' % (c, b)


def vr(b, n=1):
    return rng('v', b, n)


def ar(b, n=1):
    return rng('a', b, n)


def sr(b, n=1):
    return rng('s', b, n)


def srd(P, d, ptr, off, nbytes):
    if off == 0:
        P.e('s_mov_b32 s%d, s%d' % (d, ptr))
        P.e('s_mov_b32 s%d, s%d' % (d + 1, ptr + 1))
    else:
        o = off if isinstance(off, str) else '0x%x' % off
        P.e('s_add_u32 s%d, s%d, %s' % (d, ptr, o))
        P.e('s_addc_u32 s%d, s%d, 0' % (d + 1, ptr + 1))
    P.e('s_mov_b32 s%d, 0x%x' % (d + 2, nbytes))
    P.e('s_mov_b32 s%d, %s' % (d + 3, SRD3))


def kernel_text(name, P, nvgpr, accum=None):
    body = '\n'.join(P.emit())
    acc = accum if accum is not None else min(256, (nvgpr + 3) // 4 * 4)
    text = """.text
.globl %s
.p2align 8
.type %s,@function
%s:
%s
""" % (name, name, name, body)
    desc = """.section .rodata,"a"
.p2align 6
.amdhsa_kernel %s
  .amdhsa_next_free_vgpr %d
  .amdhsa_next_free_sgpr 102
  .amdhsa_accum_offset %d
  .amdhsa_group_segment_fixed_size 0
  .amdhsa_kernarg_size 112
  .amdhsa_user_sgpr_count 2
  .amdhsa_user_sgpr_kernarg_segment_ptr 1
  .amdhsa_system_sgpr_workgroup_id_x 1
.end_amdhsa_kernel
""" % (name, nvgpr, acc)
    return text, desc


def wave_lane(P, vlane, swave, tmp):
    P.e('v_lshrrev_b32 v%d, 6, v0' % tmp)
    P.e('v_and_b32 v%d, 63, v0' % vlane)
    P.e('v_readfirstlane_b32 s%d, v%d' % (swave, tmp))


def f2u(x):
    import struct
    return struct.unpack('<I', struct.pack('<f', x))[0]


def fhex(x):
    return '0x%08x' % f2u(x)


def round_bf16(P, dst, src, tmp=None):
    P.e('v_cvt_pk_bf16_f32 v%d, v%d, v%d' % (dst, src, src))
    P.e('v_lshlrev_b32 v%d, 16, v%d' % (dst, dst))


class Prof:
    def __init__(self, on, base=64):
        self.on = on
        self.n = 0
        self.base = base

    def stamp(self, P):
        if not self.on:
            return
        b = self.base + 4 * self.n
        assert b + 3 < 100
        P.e('s_memtime s[%d:%d]' % (b, b + 1))
        P.e('s_memrealtime s[%d:%d]' % (b + 2, b + 3))
        P.e('s_waitcnt lgkmcnt(0)')
        self.n += 1

    def dump(self, P, wg, lbl):
        if not self.on:
            return
        self.stamp(P)
        P.e('s_load_dwordx2 s[56:57], s[0:1], %d' % KA_DBG)
        P.e('s_waitcnt lgkmcnt(0)')
        P.e('s_cmp_lg_u32 s2, %d' % wg)
        P.e('s_cbranch_scc1 %s' % lbl)
        P.e('s_mov_b32 s58, 256')
        P.e('s_mov_b32 s59, 0x00020000')
        P.e('v_cmp_eq_u32 vcc, 0, v0')
        P.e('s_and_saveexec_b64 s[60:61], vcc')
        P.e('s_cbranch_execz %s' % lbl)
        P.e('v_mov_b32 v3, 0')
        regs = []
        for i in range(self.n):
            regs += [self.base + 4 * i, self.base + 4 * i + 2]
        for i, rg in enumerate(regs):
            P.e('v_mov_b32 v2, s%d' % rg)
            P.e('buffer_store_dword v2, v3, s[56:59], 0 offen offset:%d' % (4 * i))
            P.e('s_waitcnt vmcnt(0)')
        P.label(lbl)


WS_TL = 0x3000000


def tl_start(P, on):
    if on:
        P.e('s_memrealtime s[96:97]')
        P.e('s_waitcnt lgkmcnt(0)')


def tl_end(P, on, kidx, lbl):
    if not on:
        return
    if on == 2:
        P.e('s_waitcnt vmcnt(0)')
        P.e('s_memrealtime s[98:99]')
        P.e('s_load_dwordx2 s[56:57], s[0:1], %d' % KA_DBG)
        P.e('s_waitcnt lgkmcnt(0)')
        P.e('s_sub_u32 s56, s56, %d' % (512 * kidx))
        P.e('s_subb_u32 s57, s57, 0')
        P.e('s_mov_b32 s58, 256')
        P.e('s_mov_b32 s59, 0x00020000')
        P.e('v_cmp_eq_u32 vcc, 0, v0')
        P.e('s_and_saveexec_b64 s[60:61], vcc')
        P.e('s_cbranch_execz %s' % lbl)
        P.e('v_mov_b32 v4, %d' % (8 * kidx))
        P.e('v_mov_b32 v2, s96')
        P.e('v_mov_b32 v3, s98')
        P.e('buffer_atomic_umax v2, v4, s[56:59], 0 offen')
        P.e('buffer_atomic_umax v3, v4, s[56:59], 0 offen offset:4')
        P.e('s_waitcnt vmcnt(0)')
        P.label(lbl)
        return
    P.e('s_waitcnt vmcnt(0)')
    P.e('s_memrealtime s[98:99]')
    P.e('s_load_dwordx2 s[56:57], s[0:1], %d' % KA_WS)
    P.e('s_waitcnt lgkmcnt(0)')
    P.e('s_add_u32 s56, s56, 0x%x' % (WS_TL + kidx * 4096))
    P.e('s_addc_u32 s57, s57, 0')
    P.e('s_mov_b32 s58, 4096')
    P.e('s_mov_b32 s59, 0x00020000')
    P.e('v_cmp_eq_u32 vcc, 0, v0')
    P.e('s_and_saveexec_b64 s[60:61], vcc')
    P.e('s_cbranch_execz %s' % lbl)
    P.e('s_lshl_b32 s62, s2, 3')
    P.e('v_mov_b32 v4, s62')
    P.e('v_mov_b32 v2, s96')
    P.e('v_mov_b32 v3, s98')
    P.e('buffer_store_dwordx2 v[2:3], v4, s[56:59], 0 offen')
    P.e('s_waitcnt vmcnt(0)')
    P.label(lbl)


def code_prefetch(P, nwg, nkb=64):
    P.e('s_cmp_ge_u32 s2, %d' % nwg)
    P.e('s_cbranch_scc1 L_cpf_skip')
    P.e('s_getpc_b64 s[20:21]')
    P.label('L_cpf_here')
    P.e('s_mov_b32 s22, L_text_end-L_cpf_here')
    P.e('s_mov_b32 s23, 0x00020000')
    P.e('v_lshlrev_b32 v250, 7, v0') if False else None
    P.e('v_lshlrev_b32 v184, 7, v0')
    for i in range(nkb // 32):
        P.e('s_mov_b32 s24, %d' % (32768 * i))
        P.e('buffer_load_dword v%d, v184, s[20:23], s24 offen' % (185 + i))
    P.label('L_cpf_skip')
```

```python
import sys, importlib
sys.path.insert(0, 'gen')
from common import *

HEADER = open('adaLN_cond__sliding_block_cached__glu_gated_geglu__prompt.s.ref').read().split('; Override launch geometry')[0]


def assemble_file(kernels, notes=''):
    out = HEADER
    out += notes
    for (name, text, desc, grid, block, lds) in kernels:
        out += '; @launch kernel=%s grid=(%d,1,1) block=(%d,1,1) lds=%d\n' % (name, grid, block, lds)
    out += '.amdgcn_target "amdgcn-amd-amdhsa--gfx950"\n'
    for k in kernels:
        out += k[1]
    out += 'L_text_end:\n'
    for k in kernels:
        out += k[2]
    return out


if __name__ == '__main__':
    import argparse
    ap = argparse.ArgumentParser()
    ap.add_argument('-o', default='full.s')
    ap.add_argument('-k', default='0')
    ap.add_argument('--opt', default='')
    a = ap.parse_args()
    opt = {}
    for kv in a.opt.split(','):
        if kv:
            k, v = kv.split('=')
            opt[k] = int(v)
    ks = []
    for k in a.k.split(','):
        if k == '0':
            import k0
            t, d = k0.gen_k0(opt=opt)
            ks.append(('ada_prep_kernel', t, d, 416 if opt.get('rp') else 160 + (opt.get('npf', 96) if opt.get('pf', 0) else 0), 256, 40960 if opt.get('rp') else 8192))
        elif k == '2':
            import k2
            t, d, lds = k2.gen_k2(opt=opt)
            ks.append(('ada_attn_kernel', t, d, 256, 256, lds))
        elif k == '3':
            import k3
            t, d, lds, grid = k3.gen_k3(opt=opt)
            ks.append(('ada_oproj_kernel', t, d, grid, 256, lds))
        elif k == '4':
            import k4
            t, d, lds = k4.gen_k4(opt=opt)
            ks.append(('ada_glu_kernel', t, d, 256, 256, lds))
        elif k == '5':
            import k3
            t, d, lds, grid = k3.gen_k5(opt=opt)
            ks.append(('ada_down_kernel', t, d, grid, 256, lds))
    def empty(name):
        P = Prog()
        P.e('s_endpgm')
        t, d = kernel_text(name, P, 8)
        return (name, t, d, 256, 256, 0)
    if opt.get('e_end'):
        for i in range(opt['e_end']):
            ks.append(empty('ada_e%d_kernel' % i))
    if opt.get('e_beg'):
        ks.insert(0, empty('ada_b_kernel'))
    notes = open('notes.txt').read() if len(ks) >= 5 else ''
    s = assemble_file(ks, notes)
    open(a.o, 'w').write(s)
    print('wrote', a.o, len(s), 'bytes')
```

```python
import sys
sys.path.insert(0, 'gen')
from asmlib import *

KA_X, KA_K, KA_V, KA_WQ, KA_WO, KA_BX, KA_WG, KA_WU, KA_WD, KA_C, KA_WMOD, KA_OUT, KA_DBG, KA_WS = [8 * i for i in range(14)]

WS_COEF = 0x0000000
WS_XH = 0x0100000
WS_O = 0x0400000
WS_X2 = 0x1400000
WS_X2A = 0x1600000
WS_ST = 0x1800000
WS_S12 = 0x1900000
WS_HH = 0x1A00000

SRD3 = '0x00020000'
import math
C0 = math.log2(math.e) / math.sqrt(128.0)


def rng(c, b, n):
    return '%s[%d:%d]' % (c, b, b + n - 1) if n > 1 else '%s%d' % (c, b)


def vr(b, n=1):
    return rng('v', b, n)


def ar(b, n=1):
    return rng('a', b, n)


def sr(b, n=1):
    return rng('s', b, n)


def srd(P, d, ptr, off, nbytes):
    if off == 0:
        P.e('s_mov_b32 s%d, s%d' % (d, ptr))
        P.e('s_mov_b32 s%d, s%d' % (d + 1, ptr + 1))
    else:
        o = off if isinstance(off, str) else '0x%x' % off
        P.e('s_add_u32 s%d, s%d, %s' % (d, ptr, o))
        P.e('s_addc_u32 s%d, s%d, 0' % (d + 1, ptr + 1))
    P.e('s_mov_b32 s%d, 0x%x' % (d + 2, nbytes))
    P.e('s_mov_b32 s%d, %s' % (d + 3, SRD3))


def kernel_text(name, P, nvgpr, accum=None):
    body = '\n'.join(P.emit())
    acc = accum if accum is not None else min(256, (nvgpr + 3) // 4 * 4)
    text = """.text
.globl %s
.p2align 8
.type %s,@function
%s:
%s
""" % (name, name, name, body)
    desc = """.section .rodata,"a"
.p2align 6
.amdhsa_kernel %s
  .amdhsa_next_free_vgpr %d
  .amdhsa_next_free_sgpr 102
  .amdhsa_accum_offset %d
  .amdhsa_group_segment_fixed_size 0
  .amdhsa_kernarg_size 112
  .amdhsa_user_sgpr_count 2
  .amdhsa_user_sgpr_kernarg_segment_ptr 1
  .amdhsa_system_sgpr_workgroup_id_x 1
.end_amdhsa_kernel
""" % (name, nvgpr, acc)
    return text, desc


def wave_lane(P, vlane, swave, tmp):
    P.e('v_lshrrev_b32 v%d, 6, v0' % tmp)
    P.e('v_and_b32 v%d, 63, v0' % vlane)
    P.e('v_readfirstlane_b32 s%d, v%d' % (swave, tmp))


def f2u(x):
    import struct
    return struct.unpack('<I', struct.pack('<f', x))[0]


def fhex(x):
    return '0x%08x' % f2u(x)


def round_bf16(P, dst, src, tmp=None):
    P.e('v_cvt_pk_bf16_f32 v%d, v%d, v%d' % (dst, src, src))
    P.e('v_lshlrev_b32 v%d, 16, v%d' % (dst, dst))


class Prof:
    def __init__(self, on, base=64):
        self.on = on
        self.n = 0
        self.base = base

    def stamp(self, P):
        if not self.on:
            return
        b = self.base + 4 * self.n
        assert b + 3 < 100
        P.e('s_memtime s[%d:%d]' % (b, b + 1))
        P.e('s_memrealtime s[%d:%d]' % (b + 2, b + 3))
        P.e('s_waitcnt lgkmcnt(0)')
        self.n += 1

    def dump(self, P, wg, lbl):
        if not self.on:
            return
        self.stamp(P)
        P.e('s_load_dwordx2 s[56:57], s[0:1], %d' % KA_DBG)
        P.e('s_waitcnt lgkmcnt(0)')
        P.e('s_cmp_lg_u32 s2, %d' % wg)
        P.e('s_cbranch_scc1 %s' % lbl)
        P.e('s_mov_b32 s58, 256')
        P.e('s_mov_b32 s59, 0x00020000')
        P.e('v_cmp_eq_u32 vcc, 0, v0')
        P.e('s_and_saveexec_b64 s[60:61], vcc')
        P.e('s_cbranch_execz %s' % lbl)
        P.e('v_mov_b32 v3, 0')
        regs = []
        for i in range(self.n):
            regs += [self.base + 4 * i, self.base + 4 * i + 2]
        for i, rg in enumerate(regs):
            P.e('v_mov_b32 v2, s%d' % rg)
            P.e('buffer_store_dword v2, v3, s[56:59], 0 offen offset:%d' % (4 * i))
            P.e('s_waitcnt vmcnt(0)')
        P.label(lbl)


WS_TL = 0x3000000


def tl_start(P, on):
    if on:
        P.e('s_memrealtime s[96:97]')
        P.e('s_waitcnt lgkmcnt(0)')


def tl_end(P, on, kidx, lbl):
    if not on:
        return
    if on == 2:
        P.e('s_waitcnt vmcnt(0)')
        P.e('s_memrealtime s[98:99]')
        P.e('s_load_dwordx2 s[56:57], s[0:1], %d' % KA_DBG)
        P.e('s_waitcnt lgkmcnt(0)')
        P.e('s_sub_u32 s56, s56, %d' % (512 * kidx))
        P.e('s_subb_u32 s57, s57, 0')
        P.e('s_mov_b32 s58, 256')
        P.e('s_mov_b32 s59, 0x00020000')
        P.e('v_cmp_eq_u32 vcc, 0, v0')
        P.e('s_and_saveexec_b64 s[60:61], vcc')
        P.e('s_cbranch_execz %s' % lbl)
        P.e('v_mov_b32 v4, %d' % (8 * kidx))
        P.e('v_mov_b32 v2, s96')
        P.e('v_mov_b32 v3, s98')
        P.e('buffer_atomic_umax v2, v4, s[56:59], 0 offen')
        P.e('buffer_atomic_umax v3, v4, s[56:59], 0 offen offset:4')
        P.e('s_waitcnt vmcnt(0)')
        P.label(lbl)
        return
    P.e('s_waitcnt vmcnt(0)')
    P.e('s_memrealtime s[98:99]')
    P.e('s_load_dwordx2 s[56:57], s[0:1], %d' % KA_WS)
    P.e('s_waitcnt lgkmcnt(0)')
    P.e('s_add_u32 s56, s56, 0x%x' % (WS_TL + kidx * 4096))
    P.e('s_addc_u32 s57, s57, 0')
    P.e('s_mov_b32 s58, 4096')
    P.e('s_mov_b32 s59, 0x00020000')
    P.e('v_cmp_eq_u32 vcc, 0, v0')
    P.e('s_and_saveexec_b64 s[60:61], vcc')
    P.e('s_cbranch_execz %s' % lbl)
    P.e('s_lshl_b32 s62, s2, 3')
    P.e('v_mov_b32 v4, s62')
    P.e('v_mov_b32 v2, s96')
    P.e('v_mov_b32 v3, s98')
    P.e('buffer_store_dwordx2 v[2:3], v4, s[56:59], 0 offen')
    P.e('s_waitcnt vmcnt(0)')
    P.label(lbl)


def code_prefetch(P, nwg, nkb=64):
    P.e('s_cmp_ge_u32 s2, %d' % nwg)
    P.e('s_cbranch_scc1 L_cpf_skip')
    P.e('s_getpc_b64 s[20:21]')
    P.label('L_cpf_here')
    P.e('s_mov_b32 s22, L_text_end-L_cpf_here')
    P.e('s_mov_b32 s23, 0x00020000')
    P.e('v_lshlrev_b32 v250, 7, v0') if False else None
    P.e('v_lshlrev_b32 v184, 7, v0')
    for i in range(nkb // 32):
        P.e('s_mov_b32 s24, %d' % (32768 * i))
        P.e('buffer_load_dword v%d, v184, s[20:23], s24 offen' % (185 + i))
    P.label('L_cpf_skip')


STMOD = ['', ' sc1', ' sc0 sc1', ' nt', ' nt sc1', ' nt sc0 sc1']


def stm(opt, key):
    return STMOD[opt.get(key, opt.get('st', 0))]


WS_WP = 0x2000000
WP_O = 0
WP_D = 8 * 256 * 2048
WP_G = WP_D + 8 * 86 * 2048
WP_BYTES = WP_G + 86 * 32 * 1024


def repack_lane_consts(P, vl, vwo, vgu, vrd, vst, t0, t1):
    P.e('v_lshrrev_b32 v%d, 2, v%d' % (t0, vl))
    P.e('v_bfe_u32 v%d, v%d, 1, 1' % (t1, vl))
    P.e('v_lshlrev_b32 v%d, 6, v%d' % (t1, t1))
    P.e('v_lshl_add_u32 v%d, v%d, 10, v%d' % (vwo, t0, t1))
    P.e('v_and_b32 v%d, 1, v%d' % (t1, vl))
    P.e('v_lshl_add_u32 v%d, v%d, 4, v%d' % (vwo, t1, vwo))
    P.e('v_mul_u32_u24 v%d, 2752, v%d' % (vgu, t0))
    P.e('v_and_b32 v%d, 3, v%d' % (t1, vl))
    P.e('v_lshl_add_u32 v%d, v%d, 4, v%d' % (vgu, t1, vgu))
    P.e('v_bfe_u32 v%d, v%d, 4, 1' % (t0, vl))
    P.e('v_lshlrev_b32 v%d, 10, v%d' % (vrd, t0))
    P.e('v_lshrrev_b32 v%d, 5, v%d' % (t0, vl))
    P.e('v_lshl_add_u32 v%d, v%d, 9, v%d' % (vrd, t0, vrd))
    P.e('v_bfe_u32 v%d, v%d, 2, 2' % (t0, vl))
    P.e('v_lshl_add_u32 v%d, v%d, 6, v%d' % (vrd, t0, vrd))
    P.e('v_and_b32 v%d, 1, v%d' % (t0, vl))
    P.e('v_lshl_add_u32 v%d, v%d, 4, v%d' % (vrd, t0, vrd))
    P.e('v_bfe_u32 v%d, v%d, 1, 1' % (t0, vl))
    P.e('v_lshl_add_u32 v%d, v%d, 3, v%d' % (vrd, t0, vrd))
    P.e('v_lshlrev_b32 v%d, 4, v%d' % (vst, vl))


def repack_issue(P, r, sgw, slds, pw, vwo, vgu, vt, sd, T):
    a, b, c, d = T + 8, T + 9, T + 10, T + 11
    d0, d1 = sd + 2 * r, sd + 2 * r + 1
    WO, WD, WG, WU = pw, pw + 2, pw + 4, pw + 6

    def dec_w(v, nks, base, soff, dst):
        P.e('s_and_b32 s%d, s%d, 7' % (c, v))
        P.e('s_lshr_b32 s%d, s%d, 3' % (d, v))
        P.e('s_mul_i32 s%d, s%d, %d' % (dst, c, nks))
        P.e('s_add_u32 s%d, s%d, s%d' % (dst, dst, d))
        P.e('s_lshl_b32 s%d, s%d, 11' % (dst, dst))
        if base:
            P.e('s_add_u32 s%d, s%d, %d' % (dst, dst, base))
        P.e('s_lshl_b32 s%d, s%d, 7' % (c, c))
        P.e('s_lshl_b32 s%d, s%d, 14' % (d, d))
        P.e('s_add_u32 s%d, s%d, s%d' % (soff, c, d))

    def dec_g(v, soff, dst):
        P.e('s_mul_i32 s%d, s%d, 1525' % (c, v))
        P.e('s_lshr_b32 s%d, s%d, 16' % (c, c))
        P.e('s_mul_i32 s%d, s%d, 43' % (d, c))
        P.e('s_sub_u32 s%d, s%d, s%d' % (d, v, d))
        P.e('s_lshl_b32 s%d, s%d, 16' % (dst, d))
        P.e('s_lshl_b32 s%d, s%d, 6' % (d, d))
        P.e('s_mul_i32 s%d, s%d, %d' % (soff, c, 16 * 2752))
        P.e('s_add_u32 s%d, s%d, s%d' % (soff, soff, d))
        P.e('s_lshl_b32 s%d, s%d, 10' % (c, c))
        P.e('s_add_u32 s%d, s%d, s%d' % (dst, dst, c))
        P.e('s_add_u32 s%d, s%d, %d' % (dst, dst, WP_G))

    def srds(p0, p1, size):
        P.e('s_mov_b64 s[%d:%d], s[%d:%d]' % (T, T + 1, p0, p0 + 1))
        P.e('s_mov_b64 s[%d:%d], s[%d:%d]' % (T + 4, T + 5, p1, p1 + 1))
        P.e('s_mov_b32 s%d, %s' % (T + 2, size))
        P.e('s_mov_b32 s%d, %s' % (T + 6, size))
        P.e('s_mov_b32 s%d, %s' % (T + 3, SRD3))
        P.e('s_mov_b32 s%d, %s' % (T + 7, SRD3))

    def dma(v, delta):
        P.e('s_add_u32 m0, s%d, %d' % (slds, 2048 * r))
        P.e('buffer_load_dwordx4 v%d, s[%d:%d], s%d offen lds' % (v, T, T + 3, a))
        P.e('s_add_u32 m0, s%d, %d' % (slds, 2048 * r + 1024))
        if delta:
            P.e('s_add_u32 s%d, s%d, %s' % (a, a, delta))
        P.e('buffer_load_dwordx4 v%d, s[%d:%d], s%d offen lds' % (v, T + 4, T + 7, a))

    if r < 2:
        P.e('s_add_u32 s%d, s%d, %d' % (b, sgw, 1024 * r))
        dec_w(b, 256, WP_O, a, d0)
        srds(WO, WO, str(4096 * 1024))
        P.e('s_add_u32 s%d, s%d, 1024' % (d1, d0))
        dma(vwo, '32')
    elif r == 2:
        dec_g(sgw, a, d0)
        srds(WG, WU, str(512 * 2752))
        P.e('s_add_u32 s%d, s%d, 32768' % (d1, d0))
        dma(vgu, None)
    elif r == 3:
        P.e('s_add_u32 s%d, s%d, 1024' % (b, sgw))
        dec_g(b, a, d0)
        P.e('s_sub_u32 s%d, s%d, 352' % (b, sgw))
        dec_w(b, 86, WP_D, T, T + 1)
        P.e('s_cmp_lt_u32 s%d, 352' % sgw)
        P.e('s_cselect_b32 s%d, s%d, s%d' % (a, a, T))
        P.e('s_cselect_b32 s%d, s%d, s%d' % (d0, d0, T + 1))
        P.e('s_cselect_b32 s%d, 32, 1' % d1)
        P.e('s_cselect_b32 s%d, 0, 32' % b)
        P.e('s_cselect_b32 s%d, %d, %d' % (T + 2, 512 * 2752, 1376 * 1024))
        P.e('s_cselect_b64 s[%d:%d], s[%d:%d], s[%d:%d]' % (T, T + 1, WG, WG + 1, WD, WD + 1))
        P.e('s_cselect_b64 s[%d:%d], s[%d:%d], s[%d:%d]' % (T + 4, T + 5, WU, WU + 1, WD, WD + 1))
        P.e('s_cselect_b64 vcc, -1, 0')
        P.e('s_lshl_b32 s%d, s%d, 10' % (d1, d1))
        P.e('s_add_u32 s%d, s%d, s%d' % (d1, d1, d0))
        P.e('s_mov_b32 s%d, s%d' % (T + 6, T + 2))
        P.e('s_mov_b32 s%d, %s' % (T + 3, SRD3))
        P.e('s_mov_b32 s%d, %s' % (T + 7, SRD3))
        P.e('v_cndmask_b32 v%d, v%d, v%d, vcc' % (vt, vwo, vgu))
        dma(vt, 's%d' % b)
    else:
        P.e('s_add_u32 s%d, s%d, 672' % (b, sgw))
        dec_w(b, 86, WP_D, a, d0)
        P.e('s_cmp_lt_u32 s%d, 16' % sgw)
        P.e('s_cselect_b32 s%d, %d, 0' % (b, 1376 * 1024))
        P.e('s_cselect_b32 s%d, s%d, 0x7ff00000' % (d0, d0))
        srds(WD, WD, 's%d' % b)
        P.e('s_add_u32 s%d, s%d, 1024' % (d1, d0))
        dma(vwo, '32')


def repack_finish(P, r, vrd, vst, regs, srd_dst, sd, mod=' sc0 sc1', cls='v'):
    for j in range(2):
        for h in range(2):
            P.e('ds_read_b64_tr_b16 %s, v%d offset:%d' % (rng(cls, regs + 4 * j + 2 * h, 2), vrd, 2048 * r + 32 * j + 256 * h))
    for j in range(2):
        P.e('buffer_store_dwordx4 %s, v%d, s[%d:%d], s%d offen%s'
            % (rng(cls, regs + 4 * j, 4), vst, srd_dst, srd_dst + 3, sd + 2 * r + j, mod))
```

```python
from common import *

LOG2E = 1.4426950408889634


def gen_k0(name='ada_prep_kernel', opt=None):
    opt = opt or {}
    tl = opt.get('tl', 0)
    P = Prog()
    END = 'L_k0_end'
    pfm = opt.get('pf', 0)
    npf = opt.get('npf', 96)
    rp = opt.get('rp', 0)
    if rp:
        pfm, npf = 1, 256
    P.e('s_cmp_ge_u32 s2, %d' % (160 + (npf if pfm else 0)))
    P.e('s_cbranch_scc1 %s' % END)
    if pfm:
        P.e('s_cmp_ge_u32 s2, 160')
        P.e('s_cbranch_scc1 L_k0_pf')
    tl_start(P, tl)
    if opt.get('cpf', 0):
        code_prefetch(P, opt.get('cpf'))
    P.e('s_load_dwordx2 s[4:5], s[0:1], %d' % KA_X)
    P.e('s_load_dwordx2 s[6:7], s[0:1], %d' % KA_C)
    P.e('s_load_dwordx2 s[8:9], s[0:1], %d' % KA_WMOD)
    P.e('s_load_dwordx2 s[10:11], s[0:1], %d' % KA_WS)
    wave_lane(P, 1, 12, 2)
    P.e('s_cmp_ge_u32 s2, 96')
    P.e('s_cbranch_scc1 L_k0_ln')
    P.e('s_waitcnt lgkmcnt(0)')
    G = Prog()
    srd(G, 16, 6, 0, 1024)
    srd(G, 20, 8, 0, 512 * 6144)
    srd(G, 24, 10, WS_COEF, 3072 * 4)
    G.e('s_and_b32 s13, s2, 7')
    G.e('s_lshl_b32 s13, s13, 1')
    G.e('s_bfe_u32 s14, s2, 0x10003')
    G.e('s_add_u32 s13, s13, s14')
    G.e('s_lshr_b32 s14, s2, 4')
    G.e('s_lshl_b32 s14, s14, 4')
    G.e('s_add_u32 s13, s13, s14')
    G.e('v_lshrrev_b32 v2, 2, v0')
    G.e('v_and_b32 v3, 3, v0')
    G.e('v_mul_u32_u24 v4, 6144, v2')
    G.e('v_lshl_add_u32 v4, v3, 4, v4')
    G.e('v_lshlrev_b32 v5, 1, v2')
    G.e('s_lshl_b32 s28, s13, 6')
    for i in range(8):
        G.e('buffer_load_ushort v%d, v5, s[16:19], 0 offen offset:%d' % (8 + i, 128 * i))
    for i in range(8):
        G.e('buffer_load_dwordx4 %s, v4, s[20:23], s28 offen' % vr(32 + 4 * i, 4))
        if i < 7:
            G.e('s_add_u32 s28, s28, %d' % (64 * 6144))
    G.e('s_lshr_b32 s14, s13, 4')
    G.e('s_cmp_eq_u32 s14, 1')
    G.e('s_cselect_b32 s15, 1, 0')
    G.e('s_cmp_eq_u32 s14, 4')
    G.e('s_cselect_b32 s15, 1, s15')
    G.e('s_cmp_lg_u32 s15, 0')
    G.e('s_cselect_b32 s15, 0x3f800000, 0')
    G.e('s_cmp_le_u32 s14, 1')
    G.e('s_cselect_b32 s29, %s, 0x3f800000' % fhex(C0))
    for i in range(8):
        c = 8 + i
        G.e('v_lshlrev_b32 v%d, 16, v%d' % (c, c))
        G.e('v_mul_f32 v16, %s, v%d' % (fhex(-LOG2E), c))
        G.e('v_exp_f32 v16, v16')
        G.e('v_add_f32 v16, 1.0, v16')
        G.e('v_rcp_f32 v16, v16')
        G.e('v_mul_f32 v%d, v%d, v16' % (c, c))
        round_bf16(G, c, c)
    for j in range(8):
        G.e('v_mov_b32 v%d, 0' % (20 + j))
    for i in range(8):
        for d in range(4):
            w = 32 + 4 * i + d
            G.e('v_lshlrev_b32 v16, 16, v%d' % w)
            G.e('v_and_b32 v17, 0xffff0000, v%d' % w)
            G.e('v_fmac_f32 v%d, v%d, v16' % (20 + 2 * d, 8 + i))
            G.e('v_fmac_f32 v%d, v%d, v17' % (21 + 2 * d, 8 + i))
    G.e('v_lshlrev_b32 v6, 7, v2')
    G.e('v_lshl_add_u32 v6, v3, 5, v6')
    G.e('ds_write_b128 v6, v[20:23]')
    G.e('ds_write_b128 v6, v[24:27] offset:16')
    G.e('v_lshrrev_b32 v6, 5, v0')
    G.e('v_and_b32 v7, 31, v0')
    G.e('v_lshlrev_b32 v6, 10, v6')
    G.e('v_lshl_add_u32 v6, v7, 2, v6')
    G.e('s_waitcnt lgkmcnt(0)')
    G.e('s_barrier')
    for p in range(8):
        G.e('ds_read_b32 v%d, v6 offset:%d' % (32 + p, 128 * p))
    for st in (4, 2, 1):
        for p in range(st):
            G.e('v_add_f32 v%d, v%d, v%d' % (32 + p, 32 + p, 32 + p + st))
    G.e('s_waitcnt lgkmcnt(0)')
    G.e('s_barrier')
    G.e('v_lshlrev_b32 v6, 2, v0')
    G.e('ds_write_b32 v6, v32')
    G.e('s_waitcnt lgkmcnt(0)')
    G.e('s_barrier')
    G.e('s_cmp_ge_u32 s12, 1')
    G.e('s_cbranch_scc1 %s' % END)
    G.e('v_lshlrev_b32 v6, 2, v7')
    for p in range(8):
        G.e('ds_read_b32 v%d, v6 offset:%d' % (32 + p, 128 * p))
    for st in (4, 2, 1):
        for p in range(st):
            G.e('v_add_f32 v%d, v%d, v%d' % (32 + p, 32 + p, 32 + p + st))
    round_bf16(G, 32, 32)
    G.e('v_add_f32 v32, s15, v32')
    round_bf16(G, 32, 32)
    G.e('v_mul_f32 v32, s29, v32')
    G.e('s_lshl_b32 s28, s13, 7')
    G.e('v_cmp_gt_u32 vcc, 32, v1')
    G.e('s_and_saveexec_b64 s[30:31], vcc')
    G.e('buffer_store_dword v32, v6, s[24:27], s28 offen' + stm(opt, 'st0'))
    tl_end(G, tl, 0, 'L_k0_tl1')
    G.e('s_endpgm')
    P.items += G.items
    P.label('L_k0_ln')
    L = Prog()
    L.e('s_waitcnt lgkmcnt(0)')
    srd(L, 16, 4, 0, 2048 * 1024)
    srd(L, 20, 10, WS_XH, 2 << 20)
    L.e('s_sub_u32 s13, s2, 96')
    L.e('v_and_b32 v2, 31, v1')
    L.e('v_lshrrev_b32 v3, 5, v1')
    L.e('v_lshlrev_b32 v4, 10, v2')
    L.e('v_lshl_add_u32 v4, v3, 4, v4')
    L.e('s_lshl_b32 s28, s13, 15')
    L.e('s_lshl_b32 s29, s12, 8')
    L.e('s_add_u32 s28, s28, s29')
    for i in range(8):
        L.e('buffer_load_dwordx4 %s, v4, s[16:19], s28 offen offset:%d' % (vr(32 + 4 * i, 4), 32 * i))
    for i in range(32):
        L.e('v_lshlrev_b32 v%d, 16, v%d' % (64 + 2 * i, 32 + i))
        L.e('v_and_b32 v%d, 0xffff0000, v%d' % (65 + 2 * i, 32 + i))

    def reduce_rows(src0, dst, slot):
        for a in range(4):
            L.e('v_add_f32 v%d, v%d, v%d' % (8 + a, src0 + a, src0 + 4 + a))
        for i in range(2, 16):
            for a in range(4):
                L.e('v_add_f32 v%d, v%d, v%d' % (8 + a, 8 + a, src0 + 4 * i + a))
        L.e('v_add_f32 v8, v8, v9')
        L.e('v_add_f32 v10, v10, v11')
        L.e('v_add_f32 v8, v8, v10')
        L.e('ds_write_b32 v5, v8 offset:%d' % slot)
        L.e('s_waitcnt lgkmcnt(0)')
        L.e('s_barrier')
        L.e('ds_read_b128 v[8:11], v6 offset:%d' % slot)
        L.e('ds_read_b128 v[12:15], v6 offset:%d' % (slot + 16))
        for a in range(4):
            L.e('v_add_f32 v%d, v%d, v%d' % (8 + a, 8 + a, 12 + a))
        L.e('v_add_f32 v8, v8, v9')
        L.e('v_add_f32 v10, v10, v11')
        L.e('v_add_f32 v%d, v8, v10' % dst)

    L.e('v_lshlrev_b32 v6, 5, v2')
    L.e('s_lshl_b32 s29, s12, 3')
    L.e('v_lshl_add_u32 v5, v3, 2, v6')
    L.e('v_add_u32 v5, s29, v5')
    reduce_rows(64, 24, 0)
    L.e('v_mul_f32 v24, %s, v24' % fhex(1.0 / 512))
    for i in range(64):
        L.e('v_sub_f32 v%d, v%d, v24' % (64 + i, 64 + i))
    for i in range(64):
        L.e('v_mul_f32 v%d, v%d, v%d' % (128 + i, 64 + i, 64 + i))
    reduce_rows(128, 25, 1024)
    L.e('v_mov_b32 v26, %s' % fhex(1e-5))
    L.e('v_fmac_f32 v26, %s, v25' % fhex(1.0 / 512))
    L.e('v_rsq_f32 v26, v26')
    for i in range(64):
        L.e('v_mul_f32 v%d, v%d, v26' % (64 + i, 64 + i))
    for i in range(32):
        L.e('v_cvt_pk_f16_f32 v%d, v%d, v%d' % (32 + i, 64 + 2 * i, 65 + 2 * i))
    L.e('v_lshlrev_b32 v4, 4, v1')
    L.e('s_lshl_b32 s28, s13, 15')
    L.e('s_lshl_b32 s29, s12, 13')
    L.e('s_add_u32 s28, s28, s29')
    for i in range(8):
        if i == 4:
            L.e('s_add_u32 s28, s28, 4096')
        L.e('buffer_store_dwordx4 %s, v4, s[20:23], s28 offen offset:%d' % (vr(32 + 4 * i, 4), 1024 * (i & 3)) + stm(opt, 'st0'))
    tl_end(L, tl, 0, 'L_k0_tl2')
    P.items += L.items
    if pfm:
        L.e('s_endpgm') if False else None
        P.e('s_endpgm')
        P.label('L_k0_pf')
        Q = Prog()
        if rp:
            for i, ka in enumerate((KA_WO, KA_WD, KA_WG, KA_WU, KA_WS)):
                Q.e('s_load_dwordx2 s[%d:%d], s[0:1], %d' % (40 + 2 * i, 41 + 2 * i, ka))
            wave_lane(Q, 1, 12, 2)
            Q.e('s_sub_u32 s13, s2, 160')
            Q.e('s_lshl_b32 s13, s13, 2')
            Q.e('s_add_u32 s13, s13, s12')
            Q.e('s_mul_i32 s14, s12, 10240')
            repack_lane_consts(Q, 1, 2, 3, 4, 5, 6, 7)
            Q.e('v_add_u32 v4, s14, v4')
            Q.e('s_waitcnt lgkmcnt(0)')
            srd(Q, 28, 48, WS_WP, WP_BYTES)
            for r in range(5):
                repack_issue(Q, r, 13, 14, 40, 2, 3, 8, 52, 16)
            for r in range(5):
                Q.e('s_waitcnt vmcnt(%d)' % (2 * (4 - r) + 2 * r))
                repack_finish(Q, r, 4, 5, 16 + 8 * r, 28, 52, mod=stm(opt, 'strp'))
            Q.e('s_waitcnt vmcnt(0)')
            P.items += Q.items
            Q = Prog()
        bufs = []
        if rp: pfm = 0
        if pfm & 4: bufs.append((KA_WQ, 0, 512 * 8192, 1))
        if pfm & 8:
            bufs.append((KA_K, 1536 * 256, 131072, 32))
            bufs.append((KA_V, 1536 * 256, 131072, 32))
        if pfm & 1: bufs.append((KA_WO, 0, 4096 * 1024, 1))
        if pfm & 2:
            bufs += [(KA_WG, 0, 512 * 2752, 1), (KA_WU, 0, 512 * 2752, 1), (KA_WD, 0, 1376 * 1024, 1)]
        for i, b in enumerate(bufs):
            Q.e('s_load_dwordx2 s[%d:%d], s[0:1], %d' % (40 + 2 * i, 41 + 2 * i, b[0]))
        Q.e('s_sub_u32 s3, s2, 160')
        Q.e('s_lshl_b32 s3, s3, 12')
        Q.e('v_lshlrev_b32 v1, 4, v0')
        Q.e('v_add_u32 v1, s3, v1')
        Q.e('s_waitcnt lgkmcnt(0)')
        step = npf * 4096
        r = 0
        for i, (ka, off, nb, rep) in enumerate(bufs):
            if rep == 1:
                srd(Q, 16, 40 + 2 * i, off, nb)
                n = (nb + step - 1) // step
                for j in range(n):
                    Q.e('s_mov_b32 s20, %d' % (j * step))
                    Q.e('buffer_load_dwordx4 %s, v1, s[16:19], s20 offen' % vr(8 + 4 * (r % 40), 4))
                    r += 1
            else:
                srd(Q, 16, 40 + 2 * i, off, 32 * 524288 - off)
                n = (32 * 131072 + step - 1) // step
                for j in range(n):
                    Q.e('v_add_u32 v2, %d, v1' % (j * step))
                    Q.e('v_lshrrev_b32 v3, 17, v2')
                    Q.e('v_and_b32 v2, 0x1ffff, v2')
                    Q.e('v_lshl_add_u32 v2, v3, 19, v2')
                    Q.e('buffer_load_dwordx4 %s, v2, s[16:19], 0 offen' % vr(8 + 4 * (r % 40), 4))
                    r += 1
        Q.e('s_waitcnt vmcnt(0)')
        P.items += Q.items
    P.label(END)
    P.e('s_endpgm')
    return kernel_text(name, P, 192)
```

```python
from common import *

MF = 'v_mfma_f32_32x32x16_bf16'
XP = 8
GA = 16
AB = lambda b, nt: 32 + 8 * (b & 1) + 4 * nt
ACC = lambda t: 64 + 16 * t
BR0 = 128


def wg_map(P, smb, snb, t0):
    P.e('s_and_b32 s%d, s2, 7' % t0)
    P.e('s_lshr_b32 s%d, s2, 3' % (t0 + 1))
    P.e('s_lshl_b32 s%d, s%d, 2' % (smb, t0))
    P.e('s_lshr_b32 s%d, s%d, 3' % (snb, t0 + 1))
    P.e('s_add_u32 s%d, s%d, s%d' % (smb, smb, snb))
    P.e('s_and_b32 s%d, s%d, 7' % (snb, t0 + 1))


def gemm(name, down, opt):
    opt = opt or {}
    D = opt.get('d5' if down else 'd3', 8)
    nks = 86 if down else 256
    nst = 22 if down else 64
    kidx = 4 if down else 2
    pre = 'L_k5' if down else 'L_k3'
    rp = opt.get('rp', 0)
    RR = 16384 if rp else max(D * 2048, 16384)
    BR = lambda j, cb: BR0 + 8 * (j % D) + 4 * cb
    tl = opt.get('tl', 0)
    pf = Prof(opt.get("prof", 0))
    P = Prog()
    P.e('s_cmp_ge_u32 s2, 256')
    P.e('s_cbranch_scc1 %s_end' % pre)
    pf.stamp(P)
    tl_start(P, tl)
    if not rp:
        P.e('s_load_dwordx2 s[48:49], s[0:1], %d' % (KA_WD if down else KA_WO))
    P.e('s_load_dwordx2 s[50:51], s[0:1], %d' % KA_WS)
    P.e('s_load_dwordx2 s[52:53], s[0:1], %d' % (KA_OUT if down else KA_X))
    wave_lane(P, 1, 32, 2)
    wg_map(P, 33, 34, 40)
    mp = opt.get('map', 0)
    if mp == 1:
        P.e('s_mov_b32 s33, 0')
        P.e('s_mov_b32 s34, 0')
    elif mp == 2:
        P.e('s_and_b32 s33, s2, 7')
        P.e('s_lshl_b32 s33, s33, 2')
        P.e('s_and_b32 s34, s2, 7')
    elif mp == 3:
        P.e('s_mov_b32 s34, 0')
    elif mp == 4:
        P.e('s_and_b32 s33, s2, 7')
        P.e('s_lshl_b32 s33, s33, 2')
    elif mp == 5:
        P.e('s_add_u32 s34, s34, 2')
        P.e('s_and_b32 s34, s34, 7')
    if not rp:
        P.e('v_lshrrev_b32 v8, 3, v1')
        P.e('v_bfe_u32 v9, v1, 2, 1')
        P.e('v_bfe_u32 v10, v1, 4, 1')
        P.e('v_xor_b32 v9, v9, v10')
        P.e('v_and_b32 v10, 3, v1')
        P.e('v_lshlrev_b32 v10, 4, v10')
        P.e('v_lshl_add_u32 v10, v9, 6, v10')
        P.e('v_lshl_add_u32 v2, v8, 10, v10')
        P.e('v_add_u32 v3, %d, v2' % (8192 - 1024))
    P.e('v_lshlrev_b32 v4, 4, v1')
    P.e('s_mul_i32 s35, s32, %d' % RR)
    if rp:
        P.e('s_mul_i32 s36, s32, %d' % (nst * 2048))
        P.e('s_mul_i32 s42, s34, %d' % (nks * 2048))
        P.e('s_add_u32 s42, s42, 0x%x' % (WS_WP + (WP_D if down else WP_O)))
    else:
        P.e('s_mul_i32 s36, s32, %d' % (nst * 16384))
        P.e('s_lshl_b32 s40, s34, 7')
        P.e('s_add_u32 s36, s36, s40')
    P.e('s_mul_i32 s37, s32, %d' % (nst * 1024))
    P.e('s_mul_i32 s40, s33, %d' % (2 * nks * 1024))
    P.e('s_add_u32 s40, s40, 0x%x' % (WS_HH if down else WS_O))
    P.e('s_add_u32 s41, s40, %d' % (nks * 1024))
    P.e('s_waitcnt lgkmcnt(0)')
    if rp:
        srd(P, 4, 50, 's42', nks * 2048)
    else:
        srd(P, 4, 48, 0, (1376 if down else 4096) * 1024)
    srd(P, 8, 50, 's40', nks * 1024)
    srd(P, 12, 50, 's41', nks * 1024)

    AG = lambda j, nt: 8 * (j % D) + 4 * nt

    def loads(j):
        if rp:
            return ['buffer_load_dwordx4 %s, v4, s[4:7], s36 offen' % ar(AG(j, 0), 4),
                    'buffer_load_dwordx4 %s, v4, s[8:11], s37 offen' % vr(BR(j, 0), 4),
                    'buffer_load_dwordx4 %s, v4, s[4:7], s36 offen offset:1024' % ar(AG(j, 1), 4),
                    'buffer_load_dwordx4 %s, v4, s[12:15], s37 offen' % vr(BR(j, 1), 4),
                    's_add_u32 s36, s36, 2048',
                    's_add_u32 s37, s37, 1024']
        r = ['s_add_u32 m0, s35, %d' % ((j % D) * 2048),
             'buffer_load_dwordx4 v2, s[4:7], s36 offen lds',
             'buffer_load_dwordx4 v3, s[4:7], s36 offen offset:1024 lds',
             'buffer_load_dwordx4 %s, v4, s[8:11], s37 offen' % vr(BR(j, 0), 4),
             'buffer_load_dwordx4 %s, v4, s[12:15], s37 offen' % vr(BR(j, 1), 4),
             's_add_u32 s36, s36, 16384',
             's_add_u32 s37, s37, 1024']
        ex = opt.get('exp', 0)
        if ex & 1:
            r = [x for x in r if ' lds' not in x]
        if ex & 2:
            r = [x for x in r if not ('buffer_load' in x and ' lds' not in x)]
        return r

    def reads(j):
        r = []
        if rp:
            return r
        o = (j % D) * 2048
        for nt in range(2):
            a = AB(j, nt)
            r.append('ds_read_b64_tr_b16 %s, v%d offset:%d' % (vr(a, 2), 5 + nt, o))
            r.append('ds_read_b64_tr_b16 %s, v%d offset:%d' % (vr(a + 2, 2), 5 + nt, o + 512))
        return r

    for j in range(D - 1):
        for f in loads(j):
            P.e(f)
    P.e('s_lshr_b32 s42, s32, 1')
    P.e('s_and_b32 s43, s32, 1')
    P.e('s_lshl_b32 s44, s33, 1')
    P.e('s_add_u32 s44, s44, s43')
    P.e('s_lshl_b32 s45, s34, 1')
    P.e('s_add_u32 s45, s45, s42')
    P.e('v_and_b32 v52, 31, v1')
    P.e('v_lshrrev_b32 v53, 5, v1')
    P.e('v_lshlrev_b32 v7, 10, v52')
    P.e('v_lshl_add_u32 v7, v53, 4, v7')
    P.e('s_lshl_b32 s46, s44, 15')
    P.e('s_lshl_b32 s47, s45, 6')
    P.e('s_add_u32 s46, s46, s47')
    P.e('s_lshl_b32 s39, s44, 15')
    P.e('s_lshl_b32 s47, s45, 11')
    P.e('s_add_u32 s39, s39, s47')
    srd(P, 16, 50, WS_X2, 2 << 20)
    srd(P, 24, 52, 0, 2 << 20)
    srd(P, 20, 50, WS_COEF + (5 if down else 2) * 2048, 2048)
    if down:
        for a in range(2):
            P.e('buffer_load_dwordx4 %s, v4, s[16:19], s39 offen offset:%d' % (vr(XP + 4 * a, 4), 1024 * a))
    else:
        for a in range(2):
            P.e('buffer_load_dwordx4 %s, v7, s[24:27], s46 offen offset:%d' % (vr(XP + 4 * a, 4), 32 * a))
        srd(P, 28, 50, WS_ST, 2048 * 128)
    P.e('v_lshlrev_b32 v48, 5, v53')
    P.e('s_lshl_b32 s47, s45, 7')
    for a in range(2):
        for h in range(2):
            P.e('buffer_load_dwordx4 %s, v48, s[20:23], s47 offen offset:%d' % (vr(GA + 8 * a + 4 * h, 4), 64 * a + 16 * h))
    NX = 6
    if not rp:
        P.e('v_bfe_u32 v49, v1, 2, 2')
        P.e('v_lshlrev_b32 v50, 7, v49')
        P.e('v_bfe_u32 v49, v1, 3, 1')
        P.e('v_lshl_add_u32 v50, v49, 6, v50')
        P.e('v_bfe_u32 v49, v1, 4, 1')
        P.e('v_lshl_add_u32 v50, v49, 5, v50')
        P.e('v_and_b32 v49, 1, v1')
        P.e('v_lshl_add_u32 v50, v49, 4, v50')
        P.e('v_bfe_u32 v49, v1, 1, 1')
        P.e('v_lshl_add_u32 v50, v49, 3, v50')
        P.e('v_lshl_add_u32 v5, v53, 10, v50')
        P.e('v_add_u32 v5, s35, v5')
        P.e('v_xor_b32 v6, 64, v5')
    for i in range(64):
        P.e('v_mov_b32 v%d, 0' % (64 + i))
    P.e('s_waitcnt vmcnt(%d)' % (4 * (D - 2) + NX))
    pf.stamp(P)
    for f in reads(0):
        P.e(f)

    def step(B, j, wait, ld, rd=True):
        fill = [[], [], [], []]
        if rp:
            if ld:
                l = loads(j + D - 1)
                fill[0] += l[0:2]
                fill[1] += l[2:]
            if rd and wait is not None:
                fill[3].append('s_waitcnt vmcnt(%d)' % (wait + (4 if ld else 0)))
            for m in range(4):
                nt, cb = m >> 1, m & 1
                B.e('%s %s, %s, %s, %s' % (MF, vr(ACC(m), 16), ar(AG(j, nt), 4), vr(BR(j, cb), 4), vr(ACC(m), 16)))
                for f in fill[m]:
                    B.e(f)
            return
        if rd:
            if wait is not None:
                fill[0].append('s_waitcnt vmcnt(%d)' % wait)
            fill[0] += reads(j + 1)
        if ld:
            l = loads(j + D - 1)
            fill[1] += l[0:3]
            fill[2] += l[3:]
        for m in range(4):
            nt, cb = m >> 1, m & 1
            B.e('%s %s, %s, %s, %s' % (MF, vr(ACC(m), 16), vr(AB(j, nt), 4), vr(BR(j, cb), 4), vr(ACC(m), 16)))
            for f in fill[m]:
                B.e(f)

    nld = nst - (D - 1)
    if down:
        for j in range(nst):
            if j == 0:
                w = 4 * (D - 3) + NX
            elif j < nld:
                w = 4 * (D - 3)
            else:
                w = max(0, 4 * (nst - 2 - j))
            if j == nld and False:
                pass
            if j > 0:
                w = 4 * (min(j + D - 2, nst - 1) - (j + 1))
            step(P, j, w if j + 1 < nst else None, j < nld, rd=(j + 1 < nst))
    else:
        nit = (nld - 1) // D
        step(P, 0, 4 * (D - 3) + NX, True)
        B = Prog()
        for jj in range(D):
            step(B, 1 + jj, 4 * (D - 3), True)
        B.e('s_sub_u32 s38, s38, 1')
        B.e('s_cmp_lg_u32 s38, 0')
        B.e('s_cbranch_scc1 %s_loop' % pre)
        P.e('s_mov_b32 s38, %d' % nit)
        P.loop('%s_loop' % pre, B)
        for j in range(1 + nit * D, nst):
            w = 4 * (min(j + D - 2, nst - 1) - (j + 1))
            step(P, j, w if j + 1 < nst else None, j < nld, rd=(j + 1 < nst))
    pf.stamp(P)
    P.e('v_add_u32 v48, s35, v4')
    for t in range(4):
        for q in range(4):
            P.e('ds_write_b128 v48, %s offset:%d' % (vr(ACC(t) + 4 * q, 4), t * 4096 + q * 1024))
    P.e('s_lshl_b32 s47, s32, 12')
    P.e('v_add_u32 v49, s47, v4')
    if RR > 16384:
        P.e('v_add_u32 v50, %d, v49' % (2 * RR))
    P.e('s_waitcnt lgkmcnt(0)')
    P.e('s_barrier')
    for s in range(4):
        for q in range(4):
            if RR > 16384:
                P.e('ds_read_b128 %s, v%d offset:%d' % (vr(64 + 16 * s + 4 * q, 4), 49 + (s >> 1), (s & 1) * RR + q * 1024))
            else:
                P.e('ds_read_b128 %s, v49 offset:%d' % (vr(64 + 16 * s + 4 * q, 4), s * RR + q * 1024))
    for i in range(16):
        P.e('v_add_f32 v%d, v%d, v%d' % (64 + i, 64 + i, 80 + i))
        P.e('v_add_f32 v%d, v%d, v%d' % (96 + i, 96 + i, 112 + i))
    for i in range(16):
        P.e('v_add_f32 v%d, v%d, v%d' % (64 + i, 64 + i, 96 + i))
    pf.stamp(P)
    for d in range(8):
        P.e('v_lshlrev_b32 v%d, 16, v%d' % (80 + 2 * d, XP + d))
        P.e('v_and_b32 v%d, 0xffff0000, v%d' % (81 + 2 * d, XP + d))
    for i in range(16):
        P.e('v_fma_f32 v%d, v%d, v%d, v%d' % (64 + i, 64 + i, GA + i, 80 + i))
    for d in range(8):
        P.e('v_cvt_pk_bf16_f32 v%d, v%d, v%d' % (96 + d, 64 + 2 * d, 65 + 2 * d))
    if down:
        for a in range(2):
            P.e('buffer_store_dwordx4 %s, v7, s[24:27], s46 offen offset:%d' % (vr(96 + 4 * a, 4), 32 * a) + stm(opt, 'st5'))
    else:
        for a in range(2):
            P.e('buffer_store_dwordx4 %s, v4, s[16:19], s39 offen offset:%d' % (vr(96 + 4 * a, 4), 1024 * a) + stm(opt, 'st3'))
        for d in range(8):
            P.e('v_lshlrev_b32 v%d, 16, v%d' % (64 + 2 * d, 96 + d))
            P.e('v_and_b32 v%d, 0xffff0000, v%d' % (65 + 2 * d, 96 + d))
        for st in (8, 4, 2, 1):
            src = 64 if st == 8 else 112
            for i in range(st):
                P.e('v_add_f32 v%d, v%d, v%d' % (112 + i, src + i, src + i + st))
        P.e('v_mov_b32 v113, v112')
        P.e('v_permlane32_swap_b32 v112, v113')
        P.e('v_add_f32 v112, v112, v113')
        P.e('v_mul_f32 v48, %s, v112' % fhex(1.0 / 32))
        for i in range(16):
            P.e('v_sub_f32 v%d, v%d, v48' % (64 + i, 64 + i))
        for i in range(8):
            P.e('v_mul_f32 v%d, v%d, v%d' % (112 + i, 64 + i, 64 + i))
        for i in range(8):
            P.e('v_fmac_f32 v%d, v%d, v%d' % (112 + i, 72 + i, 72 + i))
        for st in (4, 2, 1):
            for i in range(st):
                P.e('v_add_f32 v%d, v%d, v%d' % (112 + i, 112 + i, 112 + i + st))
        P.e('v_mov_b32 v113, v112')
        P.e('v_permlane32_swap_b32 v112, v113')
        P.e('v_add_f32 v49, v112, v113')
        P.e('v_and_b32 v50, 31, v1')
        P.e('v_lshlrev_b32 v50, 7, v50')
        P.e('s_lshl_b32 s47, s44, 12')
        P.e('s_lshl_b32 s41, s45, 3')
        P.e('s_add_u32 s47, s47, s41')
        P.e('v_cmp_gt_u32 vcc, 32, v1')
        P.e('s_and_saveexec_b64 s[40:41], vcc')
        P.e('buffer_store_dwordx2 v[48:49], v50, s[28:31], s47 offen' + stm(opt, 'st3'))
    P.e('s_waitcnt vmcnt(0)')
    if pf.on:
        pf.dump(P, opt.get('wg', 0), pre + '_pd')
    tl_end(P, tl, kidx, pre + '_tl')
    P.label('%s_end' % pre)
    P.e('s_endpgm')
    nv = BR0 + 8 * D
    t, d = kernel_text(name, P, 512, 256) if rp else kernel_text(name, P, nv)
    return t, d, 4 * RR, 256


def gen_k3(name='ada_oproj_kernel', opt=None):
    return gemm(name, False, opt)


def gen_k5(name='ada_down_kernel', opt=None):
    return gemm(name, True, opt)
```

```python
from common import *
from k3 import wg_map
import math

MF = 'v_mfma_f32_32x32x16_bf16'
UOFF = 49152
IMG = 98304
LDS_BYTES = 163840
STG = 3072
AF = lambda b, i: 32 + 12 * (b & 1) + 4 * i
BF = lambda b, cb: 56 + 8 * (b & 1) + 4 * cb
ACC = lambda i, cb: 128 + (2 * i + cb) * 16
XF = lambda ks, cb: 64 + (2 * ks + cb) * 4
LOG2E = 1.4426950408889634


def a_reads(kk):
    slot, kl = (kk >> 1) & 3, kk & 1
    r = []
    for i in range(3):
        a = AF(kk, i)
        o = slot * STG + kl * 1536 + 32 * i
        r.append('ds_read_b64_tr_b16 %s, v8 offset:%d' % (vr(a, 2), o))
        r.append('ds_read_b64_tr_b16 %s, v9 offset:%d' % (vr(a + 2, 2), o))
    return r


def b_reads(kk):
    return ['ds_read_b128 %s, v10 offset:%d' % (vr(BF(kk, cb), 4), cb * 32768 + kk * 1024) for cb in range(2)]


def w_dma(slot):
    r = ['s_add_u32 m0, s35, %d' % (slot * STG)]
    for p in range(3):
        r.append('buffer_load_dwordx4 v%d, s[4:7], s36 offen offset:%d lds' % (2 + p, 1024 * p))
    r.append('s_add_u32 m0, s35, %d' % (UOFF + slot * STG))
    for p in range(3):
        r.append('buffer_load_dwordx4 v%d, s[8:11], s36 offen offset:%d lds' % (5 + p, 1024 * p))
    r.append('s_add_u32 s36, s36, %d' % (32 * 2752))
    return r


def gen_k4(name='ada_glu_kernel', opt=None):
    opt = opt or {}
    tl = opt.get('tl', 0)
    pf = Prof(opt.get('prof', 0))
    P = Prog()
    P.e('s_cmp_ge_u32 s2, 256')
    P.e('s_cbranch_scc1 L_k4_end')
    pf.stamp(P)
    tl_start(P, tl)
    rp = opt.get('rp', 0)
    DW = opt.get('d4', 21)
    USE_OFF = 2048 if rp else UOFF
    CO = 65536 if rp else 3 * STG
    img = 0 if rp else IMG
    if not rp:
        P.e('s_load_dwordx2 s[48:49], s[0:1], %d' % KA_WG)
        P.e('s_load_dwordx2 s[50:51], s[0:1], %d' % KA_WU)
    P.e('s_load_dwordx2 s[52:53], s[0:1], %d' % KA_WS)
    wave_lane(P, 1, 32, 2)
    wg_map(P, 33, 34, 40)
    P.e('s_lshl_b32 s37, s34, 2')
    P.e('s_add_u32 s37, s37, s32')
    P.e('v_lshlrev_b32 v11, 4, v1')
    P.e('v_lshrrev_b32 v12, 5, v1')
    P.e('v_and_b32 v13, 31, v1')
    P.e('s_waitcnt lgkmcnt(0)')
    srd(P, 12, 52, WS_X2, 2 << 20)
    srd(P, 16, 52, WS_ST, 2048 * 128)
    srd(P, 20, 52, WS_COEF + 3 * 2048, 4096)
    P.e('s_lshl_b32 s40, s33, 16')
    P.e('s_lshl_b32 s41, s32, 13')
    P.e('s_add_u32 s40, s40, s41')
    P.e('s_add_u32 s41, s40, 4096')
    P.e('s_add_u32 s42, s40, 32768')
    P.e('s_add_u32 s43, s42, 4096')
    P.e('v_lshlrev_b32 v14, 7, v13')
    P.e('v_lshl_add_u32 v14, v12, 6, v14')
    P.e('s_lshl_b32 s44, s33, 13')
    for cb in range(2):
        for t in range(4):
            P.e('buffer_load_dwordx4 %s, v14, s[16:19], s44 offen offset:%d' % (vr(128 + 16 * cb + 4 * t, 4), 16 * t))
        if cb == 0:
            P.e('s_add_u32 s44, s44, 4096')
    P.e('s_lshr_b32 s45, s32, 1')
    P.e('s_mul_i32 s45, s45, %d' % USE_OFF)
    P.e('s_and_b32 s46, s32, 1')
    P.e('s_lshl_b32 s46, s46, 10')
    P.e('s_add_u32 s45, s45, s46')
    P.e('s_add_u32 m0, s45, %d' % CO)
    P.e('s_lshl_b32 s46, s32, 10')
    P.e('buffer_load_dwordx4 v11, s[20:23], s46 offen lds')
    for ks in range(8):
        for cb in range(2):
            P.e('buffer_load_dwordx4 %s, v11, s[12:15], s%d offen offset:%d'
                % (vr(XF(ks, cb), 4), 40 + 2 * cb + (ks >> 2), (ks & 3) * 1024))
    AGW = lambda ks, i: 12 * (ks % DW) + 4 * i
    wq = []

    def wload(ks):
        r = []
        if ks and (ks & 3) == 0:
            r.append('s_add_u32 s36, s36, 4096')
        for i in range(3):
            r.append('buffer_load_dwordx4 %s, v%d, s[4:7], s36 offen offset:%d' % (ar(AGW(ks, i), 4), (11, 2, 3)[i], (ks & 3) * 1024))
        return r
    if rp:
        srd(P, 4, 52, WS_WP + WP_G, 86 * 32768)
        P.e('v_add_u32 v2, 32768, v11')
        P.e('v_add_u32 v3, 65536, v11')
        P.e('s_mul_i32 s36, s37, %d' % (3 * 32768))
        NW0 = opt.get('w40', 12)
        for ks in range(NW0):
            for f in wload(ks):
                P.e(f)
        P.e('v_add_u32 v10, %d, v11' % img)
    else:
        srd(P, 4, 48, 0, 512 * 2752)
        srd(P, 8, 50, 0, 512 * 2752)
        for p in range(3):
            P.e('v_add_u32 v15, %d, v1' % (64 * p))
            P.e('v_mul_u32_u24 v16, 43691, v15')
            P.e('v_lshrrev_b32 v16, 18, v16')
            P.e('v_mul_u32_u24 v17, 6, v16')
            P.e('v_sub_u32 v17, v15, v17')
            P.e('v_lshlrev_b32 v17, 4, v17')
            P.e('v_subrev_u32 v17, %d, v17' % (1024 * p)) if p else None
            P.e('v_mul_u32_u24 v18, 2752, v16')
            P.e('v_add_u32 v%d, v18, v17' % (2 + p))
            P.e('v_xor_b32 v16, 4, v16')
            P.e('v_mul_u32_u24 v18, 2752, v16')
            P.e('v_add_u32 v%d, v18, v17' % (5 + p))
        P.e('s_mul_i32 s35, s32, %d' % (4 * STG))
        P.e('s_mul_i32 s36, s37, 96')
        for S in range(3):
            for f in w_dma(S):
                P.e(f)
        pf.stamp(P)
        P.e('v_bfe_u32 v15, v1, 2, 2')
        P.e('v_lshl_add_u32 v15, v12, 3, v15')
        P.e('v_mul_u32_u24 v16, 96, v15')
        P.e('v_and_b32 v15, 1, v1')
        P.e('v_lshl_add_u32 v16, v15, 4, v16')
        P.e('v_bfe_u32 v15, v1, 1, 1')
        P.e('v_lshl_add_u32 v16, v15, 3, v16')
        P.e('v_add_u32 v16, s35, v16')
        P.e('v_bfe_u32 v15, v1, 4, 1')
        P.e('v_mul_u32_u24 v17, %d, v15' % (UOFF + 384))
        P.e('v_add_u32 v8, v16, v17')
        P.e('v_mul_u32_u24 v17, %d, v15' % (UOFF - 384))
        P.e('v_add_u32 v9, v16, v17')
        P.e('v_add_u32 v9, 384, v9')
        P.e('v_add_u32 v10, %d, v11' % IMG)
    for cb in range(2):
        b = 128 + 16 * cb
        mu, rs = 20 + 4 * cb, 22 + 4 * cb
        P.e('v_add_f32 v28, v%d, v%d' % (b, b + 2))
        P.e('v_add_f32 v29, v%d, v%d' % (b + 4, b + 6))
        P.e('v_add_f32 v30, v%d, v%d' % (b + 8, b + 10))
        P.e('v_add_f32 v31, v%d, v%d' % (b + 12, b + 14))
        P.e('v_add_f32 v28, v28, v29')
        P.e('v_add_f32 v30, v30, v31')
        P.e('v_add_f32 v28, v28, v30')
        P.e('v_mov_b32 v29, v28')
        P.e('v_permlane32_swap_b32 v28, v29')
        P.e('v_add_f32 v28, v28, v29')
        P.e('v_mul_f32 v28, 0x3d800000, v28')
        for i in range(8):
            P.e('v_sub_f32 v%d, v%d, v28' % (b + 2 * i, b + 2 * i))
        P.e('v_mul_f32 v29, v%d, v%d' % (b, b))
        for i in range(1, 8):
            P.e('v_fmac_f32 v29, v%d, v%d' % (b + 2 * i, b + 2 * i))
        P.e('v_add_f32 v30, v%d, v%d' % (b + 1, b + 3))
        for i in range(2, 8):
            P.e('v_add_f32 v30, v30, v%d' % (b + 2 * i + 1))
        P.e('v_fmac_f32 v30, 0x42000000, v29')
        P.e('v_mov_b32 v29, v30')
        P.e('v_permlane32_swap_b32 v30, v29')
        P.e('v_add_f32 v30, v30, v29')
        P.e('v_mov_b32 v29, %s' % fhex(1e-5))
        P.e('v_fmac_f32 v29, %s, v30' % fhex(1.0 / 512))
        P.e('v_rsq_f32 v%d, v29' % rs)
        P.e('v_mul_f32 v%d, v28, v%d' % (mu, rs))
        P.e('v_sub_f32 v%d, 0, v%d' % (mu, mu))
    P.e('s_waitcnt vmcnt(%d)' % (16 + (3 * NW0 if rp else 18)))
    P.e('s_barrier')
    P.e('s_lshl_b32 s45, s32, 9')
    P.e('v_lshlrev_b32 v15, 5, v12')
    P.e('v_add_u32 v15, s45, v15')
    P.e('v_add_u32 v15, %d, v15' % CO)
    P.e('s_lshl_b32 s45, s32, 13')
    P.e('v_add_u32 v16, s45, v10')
    CB = lambda ks: 160 + 16 * (ks & 1)

    def coef(ks):
        c = CB(ks)
        return ['ds_read_b128 %s, v15 offset:%d' % (vr(c, 4), USE_OFF + 64 * ks),
                'ds_read_b128 %s, v15 offset:%d' % (vr(c + 4, 4), USE_OFF + 64 * ks + 16),
                'ds_read_b128 %s, v15 offset:%d' % (vr(c + 8, 4), 64 * ks),
                'ds_read_b128 %s, v15 offset:%d' % (vr(c + 12, 4), 64 * ks + 16)]
    for f in coef(0):
        P.e(f)
    for ks in range(8):
        if ks < 7:
            for f in coef(ks + 1):
                P.e(f)
        c = CB(ks)
        for cb in range(2):
            x = XF(ks, cb)
            t0 = 192 + 8 * cb
            for d in range(4):
                P.e('v_lshlrev_b32 v%d, 16, v%d' % (t0 + 2 * d, x + d))
                P.e('v_and_b32 v%d, 0xffff0000, v%d' % (t0 + 2 * d + 1, x + d))
            for d in range(4):
                P.e('v_pk_fma_f32 %s, %s, %s, %s op_sel_hi:[1,0,0]' % (vr(t0 + 2 * d, 2), vr(t0 + 2 * d, 2), vr(22 + 4 * cb, 2), vr(20 + 4 * cb, 2)))
            for d in range(4):
                P.e('v_pk_fma_f32 %s, %s, %s, %s' % (vr(t0 + 2 * d, 2), vr(t0 + 2 * d, 2), vr(c + 2 * d, 2), vr(c + 8 + 2 * d, 2)))
            for d in range(4):
                P.e('v_cvt_pk_bf16_f32 v%d, v%d, v%d' % (x + d, t0 + 2 * d, t0 + 2 * d + 1))
            P.e('ds_write_b128 v16, %s offset:%d' % (vr(x, 4), cb * 32768 + ks * 1024))
            if rp:
                n0 = NW0 + ((DW - NW0) * (2 * ks + cb)) // 16
                n1 = NW0 + ((DW - NW0) * (2 * ks + cb + 1)) // 16
                for k2 in range(n0, n1):
                    for f in wload(k2):
                        P.e(f)
    P.e('s_waitcnt lgkmcnt(0)')
    P.e('s_barrier')
    pf.stamp(P)
    P.e('s_cmp_ge_u32 s37, 29')
    P.e('s_cbranch_scc1 L_k4_done')
    if rp:
        bo = lambda kk, cb: 'ds_read_b128 %s, v%d offset:%d' % (vr(BF(kk, cb), 4), (10, 17)[cb], kk * 1024)
        P.e('v_add_u32 v17, 32768, v10')
        P.e(bo(0, 0))
        P.e(bo(0, 1))
        for kk in range(32):
            fill = [[] for _ in range(6)]
            if kk + 1 < 32:
                fill[0].append(bo(kk + 1, 0))
                fill[1].append(bo(kk + 1, 1))
            if kk >= 1 and kk - 1 + DW < 32:
                w = wload(kk - 1 + DW)
                fill[2] += w[:-2]
                fill[3] += w[-2:-1]
                fill[4] += w[-1:]
            for m in range(6):
                i, cb = m >> 1, m & 1
                c = '0' if kk == 0 else vr(ACC(i, cb), 16)
                P.e('%s %s, %s, %s, %s' % (MF, vr(ACC(i, cb), 16), ar(AGW(kk, i), 4), vr(BF(kk, cb), 4), c))
                for f in fill[m]:
                    P.e(f)
    else:
        for i in range(96):
            P.e('v_mov_b32 v%d, 0' % (128 + i))
        P.e('s_waitcnt vmcnt(12)')
        for f in a_reads(0) + b_reads(0):
            P.e(f)
        B = Prog()
        for kk in range(8):
            t, kl = kk >> 1, kk & 1
            fill = [[] for _ in range(6)]
            rd = a_reads(kk + 1)
            bd = b_reads(kk + 1)
            if kl == 1:
                fill[0].append('s_waitcnt vmcnt(12)')
            fill[0] += [bd[0], rd[0], rd[1]]
            fill[1] += [bd[1], rd[2], rd[3]]
            fill[2] += [rd[4], rd[5]]
            if kl == 0:
                d = w_dma((t + 3) & 3)
                fill[1] += d[0:2]
                fill[2] += d[2:3]
                fill[3] += d[3:6]
                fill[4] += d[6:7]
                fill[5] += d[7:]
            for m in range(6):
                i, cb = m >> 1, m & 1
                B.e('%s %s, %s, %s, %s' % (MF, vr(ACC(i, cb), 16), vr(AF(kk, i), 4), vr(BF(kk, cb), 4), vr(ACC(i, cb), 16)))
                for f in fill[m]:
                    B.e(f)
        B.e('v_add_u32 v10, 8192, v10')
        B.e('s_sub_u32 s38, s38, 1')
        B.e('s_cmp_lg_u32 s38, 0')
        B.e('s_cbranch_scc1 L_k4_loop')
        P.e('s_mov_b32 s38, 4')
        P.loop('L_k4_loop', B)
    pf.stamp(P)
    P.e('s_mul_i32 s40, s33, %d' % (2 * 86 * 1024))
    P.e('s_add_u32 s40, s40, 0x%x' % WS_HH)
    P.e('s_add_u32 s41, s40, %d' % (86 * 1024))
    srd(P, 12, 52, 's40', 86 * 1024)
    srd(P, 16, 52, 's41', 86 * 1024)
    P.e('s_mul_i32 s42, s37, 3072')
    c = -2.0 * math.sqrt(2.0 / math.pi) * LOG2E
    P.e('s_mov_b32 s43, %s' % fhex(c))
    P.e('v_mov_b32 v20, %s' % fhex(c * 0.044715))
    for i in range(3):
        for cb in range(2):
            a = ACC(i, cb)
            t = 32 + 16 * ((2 * i + cb) & 1)
            for j in range(8):
                P.e('v_mul_f32 v%d, v%d, v%d' % (t + j, a + j, a + j))
            for j in range(8):
                P.e('v_fma_f32 v%d, v%d, v20, s43' % (t + j, t + j))
            for j in range(8):
                P.e('v_mul_f32 v%d, v%d, v%d' % (t + j, t + j, a + j))
            for j in range(8):
                P.e('v_exp_f32 v%d, v%d' % (t + j, t + j))
            for j in range(8):
                P.e('v_mul_f32 v%d, v%d, v%d' % (a + j, a + j, a + 8 + j))
            for j in range(8):
                P.e('v_add_f32 v%d, 1.0, v%d' % (t + j, t + j))
            for j in range(8):
                P.e('v_rcp_f32 v%d, v%d' % (t + j, t + j))
            for j in range(8):
                P.e('v_mul_f32 v%d, v%d, v%d' % (a + j, a + j, t + j))
            for j in range(4):
                P.e('v_cvt_pk_bf16_f32 v%d, v%d, v%d' % (t + 8 + j, a + 2 * j, a + 2 * j + 1))
            P.e('buffer_store_dwordx4 %s, v11, s[%d:%d], s42 offen offset:%d' % (vr(t + 8, 4), 12 + 4 * cb, 15 + 4 * cb, 1024 * i) + stm(opt, 'st4'))
    P.label('L_k4_done')
    P.e('s_waitcnt vmcnt(0)')
    if pf.on:
        pf.dump(P, opt.get('wg', 0), 'L_k4_pd')
    tl_end(P, tl, 3, 'L_k4_tl')
    P.label('L_k4_end')
    P.e('s_endpgm')
    if rp:
        t, d = kernel_text(name, P, 512, 256)
        return t, d, 65536 + 4096
    t, d = kernel_text(name, P, 256)
    return t, d, LDS_BYTES
```
